```python
import torch

def _softmax(x, axis=-1):
    return torch.softmax(x, dim=axis)
def _gelu(x):
    return torch.nn.functional.gelu(x, approximate="tanh")
def _silu(x):
    return torch.nn.functional.silu(x)
def _sigmoid(x):
    return torch.sigmoid(x)
def _layernorm(x, axis=-1, eps=1e-5):
    m = x.mean(dim=axis, keepdim=True)
    v = x.var(dim=axis, keepdim=True, unbiased=False)
    return (x - m) / torch.sqrt(v + eps)
def _scatter_add(tgt, idx, src, axis=0):
    return tgt.clone().index_add_(axis, idx, src)
def _segment_sum(src, seg, n):
    out = torch.zeros((n,) + src.shape[1:], dtype=src.dtype)
    return out.index_add_(0, seg, src)
def _pad(x, pw):
    flat = tuple(v for pair in reversed(pw) for v in pair)
    return torch.nn.functional.pad(x, flat)

kernel_name = 'sequential_preLN__ssm_conv_h3__glu_gated_geglu__prompt'

def setup_inputs():

    _w = (lambda a: (lambda t: t.to(torch.bfloat16) if t.is_floating_point() else t)(torch.as_tensor(a)))
    def _A_setup():
        B, S, D = 1, 2048, 1024
        ks = 4
        return {
            "q": _w((lambda *s: torch.randn(*s, dtype=torch.bfloat16) * 0.05)(B, S, D)),
            "k": _w((lambda *s: torch.randn(*s, dtype=torch.bfloat16) * 0.2)(B, S, D)),
            "v": _w((lambda *s: torch.randn(*s, dtype=torch.bfloat16) * 0.2)(B, S, D)),
            "shift_k": _w((lambda *s: torch.randn(*s, dtype=torch.bfloat16) * 0.2)(D, ks) * 0.5),
            "ssm_k": _w((lambda *s: torch.randn(*s, dtype=torch.bfloat16) * 0.4)(D, S) * (1.0 / S ** 0.5)),
            "ssm_D": _w((lambda *s: torch.randn(*s, dtype=torch.bfloat16) * 0.2)(D)),
        }
    _A_in = _A_setup()

    def _B_setup():
        B, S, Dm, Df = 1, 2048, 1024, 3584
        return {
            "x": _w((lambda *s: torch.randn(*s, dtype=torch.bfloat16) * 0.05)(B, S, Dm)),
            "w_gate": _w((lambda *s: torch.randn(*s, dtype=torch.bfloat16) * 0.4)(Dm, Df) * (Dm ** -0.5)),
            "w_up": _w((lambda *s: torch.randn(*s, dtype=torch.bfloat16) * 0.4)(Dm, Df) * (Dm ** -0.5)),
            "w_down": _w((lambda *s: torch.randn(*s, dtype=torch.bfloat16) * 0.4)(Df, Dm) * (Df ** -0.5)),
        }
    _B_in = _B_setup()

    return {
        "A_q": _A_in["q"],
        "A_k": _A_in["k"],
        "A_v": _A_in["v"],
        "A_shift_k": _A_in["shift_k"],
        "A_ssm_k": _A_in["ssm_k"],
        "A_ssm_D": _A_in["ssm_D"],
        "B_x": _B_in["x"],
        "B_w_gate": _B_in["w_gate"],
        "B_w_up": _B_in["w_up"],
        "B_w_down": _B_in["w_down"],
    }

def reference(A_q, A_k, A_v, A_shift_k, A_ssm_k, A_ssm_D, B_x, B_w_gate, B_w_up, B_w_down):
    def _A_ref(q, k, v, shift_k, ssm_k, ssm_D):
        B, S, D = q.shape
        ks = shift_k.shape[-1]
        k_pad = _pad(k, ((0, 0), (ks - 1, 0), (0, 0)))
        k_shift = torch.zeros_like(k)
        for t in range(ks):
            k_shift = k_shift + k_pad[:, t:t + S, :] * shift_k[:, ks - 1 - t][None, None, :]
        kv = k_shift * v
        L = 2 * S
        kv_pad = _pad(kv, ((0, 0), (0, S), (0, 0)))
        kf_pad = _pad(ssm_k, ((0, 0), (0, S)))
        kv_f = (lambda x, axes=(-2,-1): torch.fft.rfft2(x.float(), dim=axes))(kv_pad[:, None, :, :], axes=(1, 2))
        kf_f = (lambda x, axes=(-2,-1): torch.fft.rfft2(x.float(), dim=axes))(kf_pad[:, None, :], axes=(1, 2))
        kf_f = (lambda x, *d: x.permute(*d))(kf_f, 1, 2, 0)
        y_f = kv_f * kf_f[None, :, :, :]
        y = (lambda x, s, axes=(-2,-1): torch.fft.irfft2(x, s=s, dim=axes).to(torch.bfloat16))(y_f, (1, L), axes=(1, 2))[:, 0, :S, :]
        y = y + kv * ssm_D[None, None, :]
        return q * y

    def _B_ref(x, w_gate, w_up, w_down):
        g = torch.einsum("bsd,df->bsf", x, w_gate)
        u = torch.einsum("bsd,df->bsf", x, w_up)
        h = _gelu(g) * u
        return torch.einsum("bsf,fd->bsd", h, w_down)

    x = A_q
    h = x + _A_ref(_layernorm(x, axis=-1), A_k, A_v, A_shift_k, A_ssm_k, A_ssm_D)
    h2 = h + _B_ref(_layernorm(h, axis=-1), B_w_gate, B_w_up, B_w_down)
    return h2
```

```python
import re

REG_RE = re.compile(r"\b([vas])(?:(\d+)|\[(\d+):(\d+)\])")
TRANS = ("v_exp_f32", "v_log_f32", "v_rcp_f32", "v_rsq_f32", "v_sqrt_f32", "v_sin_f32", "v_cos_f32")


def regs_of(tok):
    out = set()
    t = tok.strip()
    if t.startswith("-"):
        t = t[1:]
    if t.startswith("abs(") or t.startswith("|"):
        t = t.strip("|")
    for m in REG_RE.finditer(t):
        k = m.group(1)
        if m.group(2) is not None:
            out.add((k, int(m.group(2))))
        else:
            for i in range(int(m.group(3)), int(m.group(4)) + 1):
                out.add((k, i))
    if re.search(r"\bvcc\b", t):
        out.add(("vcc", 0))
    if re.search(r"\bexec\b", t):
        out.add(("exec", 0))
    if re.search(r"\bm0\b", t):
        out.add(("m0", 0))
    return out


def split_ops(s):
    ops, depth, cur = [], 0, ""
    for ch in s:
        if ch in "[(":
            depth += 1
        if ch in "])":
            depth -= 1
        if ch == "," and depth == 0:
            ops.append(cur.strip())
            cur = ""
        else:
            cur += ch
    if cur.strip():
        ops.append(cur.strip())
    return ops


class Ins:
    __slots__ = ("text", "op", "cls", "wr", "rd", "srcc", "srcab", "passes", "dpp", "store_data", "wide", "lds_dma",
                 "nops", "label", "target")

    def __init__(self, text):
        self.text = text
        self.label = None
        self.target = None
        self.wr, self.rd = set(), set()
        self.srcc, self.srcab = set(), set()
        self.passes = 0
        self.dpp = False
        self.store_data = set()
        self.wide = False
        self.lds_dma = False
        self.nops = 1
        t = text.split(";")[0].strip()
        if t.endswith(":"):
            self.cls = "label"
            self.label = t[:-1]
            self.op = ""
            self.nops = 0
            return
        if t.startswith(".") or not t:
            self.cls = "dir"
            self.op = ""
            self.nops = 0
            return
        parts = t.split(None, 1)
        op = parts[0]
        rest = parts[1] if len(parts) > 1 else ""
        self.op = op
        ops = split_ops(rest)
        mods = ""
        if ops:
            last = ops[-1].split(None, 1)
            ops[-1] = last[0]
            mods = last[1] if len(last) > 1 else ""
        R = [regs_of(o) for o in ops]
        if op.startswith("v_mfma"):
            self.cls = "mfma"
            self.wr = R[0]
            self.srcab = R[1] | R[2]
            self.srcc = R[3]
            self.rd = self.srcab | self.srcc
            self.passes = 8 if "32x32x16" in op else 4 if "16x16x32" in op else None
            assert self.passes, op
        elif op.startswith("v_"):
            self.cls = "valu"
            self.dpp = "_dpp" in op or "row_" in mods or "quad_perm" in mods or "wave_" in mods
            if op.startswith("v_cmp"):
                self.wr = R[0]
                self.rd = set().union(*R[1:])
                if op.startswith("v_cmpx"):
                    self.wr = self.wr | {("exec", 0)}
            elif op.startswith(("v_add_co", "v_sub_co", "v_addc_co", "v_subb_co")):
                self.wr = R[0] | R[1]
                self.rd = set().union(*R[2:])
            elif op.startswith("v_permlane") and "swap" in op:
                self.wr = R[0] | R[1]
                self.rd = R[0] | R[1]
            elif op.startswith("v_swap"):
                self.wr = R[0] | R[1]
                self.rd = R[0] | R[1]
            elif op == "v_nop":
                pass
            else:
                self.wr = R[0]
                self.rd = set().union(*R[1:]) if len(R) > 1 else set()
                if op.startswith(("v_fmac", "v_dot2c", "v_pk_fmac")) or self.dpp:
                    self.rd = self.rd | R[0]
                if op.startswith("v_cndmask") and len(ops) == 3:
                    self.rd = self.rd | {("vcc", 0)}
        elif op.startswith(("buffer_", "global_", "flat_")):
            self.cls = "vmem"
            allr = set().union(*R) if R else set()
            is_lds = re.search(r"\blds\b", mods) is not None or "_lds_" in op
            if is_lds:
                self.lds_dma = True
                self.rd = allr | {("m0", 0)}
            elif "load" in op:
                self.wr = R[0]
                self.rd = set().union(*R[1:])
            elif "store" in op or "atomic" in op:
                self.rd = allr
                di = 0 if op.startswith("buffer_") else 1
                self.store_data = R[di]
                self.wide = "x3" in op or "x4" in op
                if "atomic" in op and "sc0" in mods:
                    self.wr = R[0]
            else:
                self.rd = allr
        elif op.startswith("ds_"):
            self.cls = "ds"
            if "read" in op or "bpermute" in op or "permute" in op or "swizzle" in op:
                self.wr = R[0]
                self.rd = set().union(*R[1:])
            else:
                self.rd = set().union(*R)
        elif op.startswith("s_"):
            self.cls = "salu"
            if op == "s_nop":
                self.nops = int(ops[0], 0) + 1
            elif op.startswith(("s_branch", "s_cbranch")):
                self.cls = "branch"
                self.target = ops[0]
            elif op.startswith(("s_cmp", "s_waitcnt", "s_barrier", "s_endpgm", "s_setprio", "s_sleep", "s_bitcmp")):
                self.rd = set().union(*R) if R else set()
            else:
                self.wr = R[0] if R else set()
                self.rd = set().union(*R[1:]) if len(R) > 1 else set()
                if "saveexec" in op:
                    self.wr = self.wr | {("exec", 0)}
        else:
            raise ValueError("unknown instruction: " + text)


def is_v(r):
    return r[0] in ("v", "a")


def need(p, c):
    n = 0
    vw = {r for r in p.wr if is_v(r)}
    sw = {r for r in p.wr if not is_v(r)}
    if p.cls == "valu":
        if c.cls == "mfma" and vw & c.rd:
            n = max(n, 2)
        if c.cls == "mfma" and ("exec", 0) in p.wr:
            n = max(n, 4)
        if c.cls == "valu":
            if c.dpp and vw & c.rd:
                n = max(n, 2)
            if c.dpp and ("exec", 0) in p.wr:
                n = max(n, 5)
            if c.op.startswith("v_permlane") and vw & c.rd:
                n = max(n, 2)
            if c.op.startswith(("v_readlane", "v_readfirstlane")) and vw & c.rd:
                n = max(n, 1)
            if c.op.startswith(("v_readlane", "v_writelane")) and sw & c.rd:
                n = max(n, 4)
            if sw & c.rd:
                n = max(n, 2)
            if p.op.startswith(TRANS) and vw & c.rd:
                n = max(n, 1)
            if ("sdwa" in p.op or "op_sel:" in p.text) and vw & (c.rd | c.wr):
                n = max(n, 1)
            if ("exec", 0) in p.wr and c.op.startswith(("v_readlane", "v_readfirstlane", "v_writelane", "v_permlane")):
                n = max(n, 4)
        if c.cls == "vmem" and sw & c.rd:
            n = max(n, 5)
        if c.cls in ("salu", "branch") and sw & c.rd:
            n = max(n, 1)
    if p.cls == "salu":
        if ("m0", 0) in p.wr and c.cls == "vmem" and c.lds_dma:
            n = max(n, 1)
    if p.cls == "vmem" and p.wide and p.store_data & c.wr:
        n = max(n, 2 if c.cls in ("valu", "mfma") else 1)
    if p.cls == "mfma":
        ps = p.passes
        if c.cls == "mfma":
            if p.wr & c.srcab:
                n = max(n, {4: 8, 8: 12}[ps])
            if p.wr & c.srcc:
                if not (p.wr == c.srcc and c.passes == ps):
                    n = max(n, {4: 6, 8: 10}[ps])
            elif p.wr & c.wr:
                n = max(n, {4: 8, 8: 12}[ps])
        elif c.cls in ("valu", "vmem", "ds"):
            if p.wr & (c.rd | c.wr):
                n = max(n, {4: 8, 8: 12}[ps])
            if c.cls == "valu" and p.srcc & c.wr:
                n = max(n, {4: 3, 8: 7}[ps])
    return n


MAXD = 14


class Asm:
    def __init__(self):
        self.ins = []

    def __call__(self, fmt, *a):
        for line in (fmt % a if a else fmt).split("\n"):
            line = line.strip()
            if line:
                self.ins.append(Ins(line))

    def label(self, name):
        self.ins.append(Ins(name + ":"))

    def _pad_for(self, hist, c):
        d = 0
        pad = 0
        for p in reversed(hist):
            if d >= MAXD:
                break
            if p.nops == 0:
                continue
            n = need(p, c)
            if n > d:
                pad = max(pad, n - d)
            d += p.nops
        return pad

    def finalize(self):
        out = []
        npad = 0
        for c in self.ins:
            if c.nops and c.cls != "branch":
                pad = self._pad_for(out[-40:], c)
                if pad:
                    out.append(Ins("s_nop %d" % (pad - 1)))
                    npad += 1
            out.append(c)
        pos = {i.label: k for k, i in enumerate(out) if i.label}
        k = 0
        while k < len(out):
            b = out[k]
            if b.cls == "branch" and b.target in pos:
                hist = out[max(0, k - 40):k + 1]
                tgt = pos[b.target]
                extra = 0
                h = list(hist)
                for c in out[tgt:tgt + 24]:
                    if c.nops == 0:
                        continue
                    if c.cls != "branch":
                        extra = max(extra, self._pad_for(h, c))
                    h.append(c)
                if extra:
                    out.insert(k, Ins("s_nop %d" % (extra - 1)))
                    pos = {i.label: kk for kk, i in enumerate(out) if i.label}
                    k += 1
                    npad += 1
            k += 1
        self.ins = out
        return npad

    def text(self):
        L = []
        for i in self.ins:
            L.append(i.text if i.cls in ("label", "dir") else "    " + i.text)
        return "\n".join(L) + "\n"

    def max_reg(self, kind):
        m = -1
        for i in self.ins:
            for r in i.wr | i.rd:
                if r[0] == kind:
                    m = max(m, r[1])
        return m


def vr(base, n=1):
    return "v%d" % base if n == 1 else "v[%d:%d]" % (base, base + n - 1)


def ar(base, n=1):
    return "a%d" % base if n == 1 else "a[%d:%d]" % (base, base + n - 1)


def sr(base, n=1):
    return "s%d" % base if n == 1 else "s[%d:%d]" % (base, base + n - 1)


def kernel_text(name, a, agpr=False):
    a.finalize()
    nv = a.max_reg("v") + 1
    na = a.max_reg("a") + 1
    ns = max(a.max_reg("s") + 1, 8)
    acc = (nv + 3) // 4 * 4
    nfv = acc + na if na > 0 else nv
    code = ".text\n.globl %s\n.p2align 8\n.type %s,@function\n%s:\n%s" % (name, name, name, a.text())
    desc = """.section .rodata,"a"
.p2align 6
.amdhsa_kernel %s
  .amdhsa_next_free_vgpr %d
  .amdhsa_next_free_sgpr %d
  .amdhsa_accum_offset %d
  .amdhsa_group_segment_fixed_size 0
  .amdhsa_kernarg_size 104
  .amdhsa_user_sgpr_count 2
  .amdhsa_user_sgpr_kernarg_segment_ptr 1
  .amdhsa_system_sgpr_workgroup_id_x 1
.end_amdhsa_kernel
""" % (name, nfv, ns, acc)
    return code, desc, (nv, na, ns)
```

```python
import sys
import os
sys.path.insert(0, os.path.dirname(os.path.abspath(__file__)))
from asmlib import Asm, vr, sr, ar, kernel_text

S, D, F = 2048, 1024, 3584
MB = 1 << 20
WS_YB, WS_H, WS_XT, WS_HH = 0, 4 * MB, 8 * MB, 16 * MB
KA = dict(q=0, k=8, v=16, shift=24, ssmk=32, ssmd=40, bx=48, wg=56, wu=64, wd=72, out=80, dbg=88, ws=96)


def srd(a, dst, ptr, off, size):
    if off:
        a("s_add_u32 s%d, s%d, 0x%x", dst, ptr, off)
        a("s_addc_u32 s%d, s%d, 0", dst + 1, ptr + 1)
    else:
        a("s_mov_b32 s%d, s%d", dst, ptr)
        a("s_mov_b32 s%d, s%d", dst + 1, ptr + 1)
    a("s_mov_b32 s%d, 0x%x", dst + 2, size)
    a("s_mov_b32 s%d, 0x20000", dst + 3)


HS, US = 4160, 4576
UOFF = 4 * HS
CH = UOFF + 2 * US
CONV_LDS = 4 * CH


def gen_conv():
    a = Asm()
    a("s_cmp_ge_u32 s2, 256")
    a("s_cbranch_scc1 L_conv_end")
    a("s_load_dwordx4 s[4:7], s[0:1], %d", KA["k"])
    a("s_load_dwordx4 s[8:11], s[0:1], %d", KA["shift"])
    a("s_load_dwordx2 s[12:13], s[0:1], %d", KA["ssmd"])
    a("s_load_dwordx2 s[14:15], s[0:1], %d", KA["ws"])
    a("s_and_b32 s3, s2, 7")
    a("s_lshl_b32 s3, s3, 5")
    a("s_lshr_b32 s62, s2, 3")
    a("s_add_u32 s3, s3, s62")
    a("v_lshrrev_b32 v3, 6, v0")
    a("v_and_b32 v4, 63, v0")
    a("v_readfirstlane_b32 s61, v3")
    a("s_lshl_b32 s62, s3, 3")
    a("v_lshlrev_b32 v1, 14, v0")
    a("v_add_u32 v1, s62, v1")
    a("v_subrev_u32 v2, 6144, v1")
    a("v_mov_b32 v5, 0x7fff0000")
    a("v_cmp_eq_u32 vcc, 0, v0")
    a("v_cndmask_b32 v2, v2, v5, vcc")
    a("s_lshl_b32 s63, s3, 2")
    a("s_add_u32 s63, s63, s61")
    a("s_lshl_b32 s63, s63, 12")
    a("v_lshlrev_b32 v6, 4, v4")
    a("v_add_u32 v6, s63, v6")
    a("v_subrev_u32 v7, 8, v6")
    a("v_cmp_eq_u32 vcc, 0, v4")
    a("v_cndmask_b32 v8, v7, v5, vcc")
    a("s_mov_b32 s64, 4096")
    a("s_mov_b32 s65, 8192")
    a("s_mov_b32 s66, 12288")
    a("s_lshl_b32 s67, s3, 5")
    a("s_waitcnt lgkmcnt(0)")
    srd(a, 24, 10, 0, D * S * 2)
    srd(a, 16, 4, 0, S * D * 2)
    srd(a, 20, 6, 0, S * D * 2)
    srd(a, 28, 14, WS_YB, S * D * 2)
    HP = 48
    for i in range(4):
        a("buffer_load_dwordx2 %s, %s, s[24:27], 0 offen offset:%d", vr(HP + 6 * i, 2), "v8" if i == 0 else "v6",
          0 if i == 0 else 1024 * i - 8)
        a("buffer_load_dwordx4 %s, v6, s[24:27], 0 offen offset:%d", vr(HP + 6 * i + 2, 4), 1024 * i)
    a("s_load_dwordx8 s[32:39], s[8:9], s67")
    a("s_load_dwordx2 s[40:41], s[12:13], s62")
    KR, VR = 10, 32
    soff = ["0", "s64", "s65", "s66"]
    for j in range(3):
        a("buffer_load_dwordx2 %s, v2, s[16:19], %s offen offset:%d", vr(KR + 2 * j, 2), soff[j >> 1], 2048 * (j & 1))
    for j in range(8):
        a("buffer_load_dwordx2 %s, v1, s[16:19], %s offen offset:%d", vr(KR + 6 + 2 * j, 2), soff[j >> 1], 2048 * (j & 1))
        a("buffer_load_dwordx2 %s, v1, s[20:23], %s offen offset:%d", vr(VR + 2 * j, 2), soff[j >> 1], 2048 * (j & 1))
    a("s_mul_i32 s60, s61, %d", CH)
    a("v_mov_b32 v72, 0")
    a("v_mov_b32 v73, 0")
    a("v_lshlrev_b32 v74, 3, v4")
    a("v_min_u32 v75, 440, v74")
    a("v_add_u32 v75, s60, v75")
    a("ds_write_b64 v75, v[72:73] offset:%d", UOFF + US)
    a("v_mov_b32 v76, 456")
    a("v_cmp_le_u32 vcc, 448, v74")
    a("v_cndmask_b32 v75, v74, v76, vcc")
    a("v_add_u32 v75, s60, v75")
    a("ds_write_b64 v75, v[72:73] offset:%d", UOFF)
    a("v_bfe_u32 v75, v4, 3, 2")
    a("v_mul_u32_u24 v75, %d, v75", HS)
    a("v_and_b32 v76, 7, v4")
    a("v_min_u32 v76, 5, v76")
    a("v_lshl_add_u32 v75, v76, 3, v75")
    a("v_add_u32 v75, s60, v75")
    a("ds_write_b64 v75, v[72:73]")
    a("v_lshlrev_b32 v9, 4, v4")
    a("v_add_u32 v9, s60, v9")
    for i in range(4):
        a("s_waitcnt vmcnt(%d)", 19 + 2 * (3 - i))
        M0, M1, P0, P1, P2, P3 = [HP + 6 * i + x for x in range(6)]
        T = 84 + 12 * i
        base = 48 + 1024 * i
        a("ds_write_b128 v9, %s offset:%d", vr(P0, 4), base + 3 * HS)
        for n, (hi, lo) in enumerate([(M1, M0), (P0, M1), (P1, P0), (P2, P1)]):
            a("v_alignbit_b32 v%d, v%d, v%d, 16", T + n, hi, lo)
        a("ds_write_b128 v9, %s offset:%d", vr(T, 4), base + 0 * HS)
        for n, src in enumerate([M1, P0, P1, P2]):
            a("v_mov_b32 v%d, v%d", T + 4 + n, src)
        a("ds_write_b128 v9, %s offset:%d", vr(T + 4, 4), base + 1 * HS)
        for n, (hi, lo) in enumerate([(P0, M1), (P1, P0), (P2, P1), (P3, P2)]):
            a("v_alignbit_b32 v%d, v%d, v%d, 16", T + 8 + n, hi, lo)
        a("ds_write_b128 v9, %s offset:%d", vr(T + 8, 4), base + 2 * HS)
    a("s_waitcnt lgkmcnt(0)")
    for c in range(4):
        for j in range(4):
            src = 32 + 2 * c + (j >> 1)
            if j & 1:
                a("s_and_b32 s%d, s%d, 0xffff0000", 44 + 4 * j + c, src)
            else:
                a("s_lshl_b32 s%d, s%d, 16", 44 + 4 * j + c, src)
    a("s_cmp_ge_u32 s61, 2")
    a("s_cselect_b32 s42, s41, s40")
    a("s_and_b32 s43, s61, 1")
    a("s_xor_b32 s43, s43, 1")
    a("s_lshl_b32 s43, s43, 4")
    a("s_lshl_b32 s42, s42, s43")
    a("s_and_b32 s42, s42, 0xffff0000")
    a("s_mov_b32 s43, s42")
    KF, VF, KS = 132, 176, 208

    def unpack(dst, src):
        a("v_lshlrev_b32 v%d, 16, v%d", dst, src)
        a("v_and_b32 v%d, 0xffff0000, v%d", dst + 1, src)

    a("s_waitcnt vmcnt(16)")
    for j in range(3):
        unpack(KF + 4 * j, KR + 2 * j)
        unpack(KF + 4 * j + 2, KR + 2 * j + 1)
    for j in range(8):
        a("s_waitcnt vmcnt(%d)", 2 * (7 - j))
        unpack(KF + 4 * (j + 3), KR + 2 * (j + 3))
        unpack(KF + 4 * (j + 3) + 2, KR + 2 * (j + 3) + 1)
        unpack(VF + 4 * j, VR + 2 * j)
        unpack(VF + 4 * j + 2, VR + 2 * j + 1)
        for p in range(2):
            ks = KS + 2 * p
            a("v_pk_mul_f32 %s, %s, %s", vr(ks, 2), vr(KF + 4 * j + 2 * p, 2), sr(44 + 12 + 2 * p, 2))
        for tap in (2, 1, 0):
            for p in range(2):
                ks = KS + 2 * p
                a("v_pk_fma_f32 %s, %s, %s, %s", vr(ks, 2), vr(KF + 4 * (j + 3 - tap) + 2 * p, 2),
                  sr(44 + 4 * tap + 2 * p, 2), vr(ks, 2))
        for p in range(2):
            a("v_pk_mul_f32 %s, %s, %s", vr(VF + 4 * j + 2 * p, 2), vr(KS + 2 * p, 2), vr(VF + 4 * j + 2 * p, 2))
    a("v_lshlrev_b32 v1, 4, v0")
    a("v_add_u32 v2, %d, v1", 2 * CH)
    W = 84
    for c in range(4):
        for n in range(4):
            a("v_cvt_pk_bf16_f32 v%d, v%d, v%d", W + 4 * c + n, VF + 4 * (7 - 2 * n) + c, VF + 4 * (6 - 2 * n) + c)
        ad = "v1" if c < 2 else "v2"
        cb = (c & 1) * CH + UOFF + 448
        a("ds_write_b128 %s, %s offset:%d", ad, vr(W + 4 * c, 4), cb + US)
        a("ds_write_b64 %s, %s offset:%d", ad, vr(W + 4 * c + 2, 2), cb)
        a("ds_write_b64 %s, %s offset:%d", ad, vr(W + 4 * c, 2), cb + 24)
    a("v_and_b32 v10, 3, v4")
    a("v_mul_u32_u24 v10, %d, v10", HS)
    a("v_bfe_u32 v11, v4, 2, 2")
    a("v_lshrrev_b32 v12, 4, v4")
    a("v_add_u32 v11, v11, v12")
    a("v_lshl_add_u32 v10, v11, 4, v10")
    a("v_add_u32 v5, s60, v10")
    a("v_and_b32 v10, 1, v4")
    a("v_bfe_u32 v11, v4, 1, 3")
    a("v_mul_u32_u24 v13, %d, v10", US)
    a("v_lshlrev_b32 v14, 2, v11")
    a("v_add_u32 v14, 3, v14")
    a("v_sub_u32 v14, v14, v12")
    a("v_lshl_add_u32 v13, v14, 4, v13")
    a("v_add_u32 v6, s60, v13")
    a("v_lshl_add_u32 v14, v11, 2, v12")
    a("v_lshlrev_b32 v14, 4, v14")
    a("v_add_u32 v14, s60, v14")
    a("v_lshl_add_u32 v8, v10, 3, v14")
    a("v_xor_b32 v7, 8, v8")
    a("s_waitcnt lgkmcnt(0)")
    a("s_barrier")
    AB = [16, 48]
    BB = [80, 112]
    ACC, UE, UF = 144, 176, 192

    def rdA(buf, t, kp):
        return "ds_read_b128 %s, v5 offset:%d" % (vr(AB[buf] + 4 * t, 4), 512 * t + 64 * kp)

    def rdB(buf, c, kp):
        return "ds_read_b128 %s, v6 offset:%d" % (vr(BB[buf] + 4 * c, 4), UOFF + 448 + 512 * c - 64 * kp)

    def reads(kp):
        buf = kp & 1
        r = [rdA(buf, 0, kp)] + [rdB(buf, c, kp) for c in range(8)] + [rdA(buf, t, kp) for t in range(1, 8)]
        return r

    for r in reads(0):
        a(r)
    for kp in range(8):
        buf = kp & 1
        fill = []
        if kp < 7:
            fill = reads(kp + 1)
        if kp == 6:
            pass
        extra = []
        if kp == 7:
            fill = ["ds_read_b64 %s, v7 offset:%d" % (vr(UE + 2 * c, 2), UOFF + US + 448 + 512 * c) for c in range(8)]
            for c in range(8):
                extra.append("v_and_b32 v%d, 0xffff0000, v%d" % (UF + 4 * c + 0, UE + 2 * c + 1))
                extra.append("v_lshlrev_b32 v%d, 16, v%d" % (UF + 4 * c + 1, UE + 2 * c + 1))
                extra.append("v_and_b32 v%d, 0xffff0000, v%d" % (UF + 4 * c + 2, UE + 2 * c))
                extra.append("v_lshlrev_b32 v%d, 16, v%d" % (UF + 4 * c + 3, UE + 2 * c))
        a("s_waitcnt lgkmcnt(0)")
        n = 0
        waited = False
        for t in range(8):
            for c in range(8 - t):
                acc = vr(ACC + 4 * (t + c), 4)
                src = "0" if (kp == 0 and t == 0) else acc
                a("v_mfma_f32_16x16x32_bf16 %s, %s, %s, %s", acc, vr(AB[buf] + 4 * t, 4), vr(BB[buf] + 4 * c, 4), src)
                n += 1
                if fill and (n % 2 == 0 or kp == 7):
                    a(fill.pop(0))
                elif extra and not fill and n >= 18:
                    if not waited:
                        a("s_waitcnt lgkmcnt(0)")
                        waited = True
                    a(extra.pop(0))
                    if extra:
                        a(extra.pop(0))
        assert not fill
        for e in extra:
            a(e)
    for c in range(8):
        for p in range(2):
            r = ACC + 4 * c + 2 * p
            a("v_pk_fma_f32 %s, %s, s[42:43], %s", vr(r, 2), vr(UF + 4 * c + 2 * p, 2), vr(r, 2))
        a("v_cvt_pk_bf16_f32 v%d, v%d, v%d", 16 + 2 * c, ACC + 4 * c, ACC + 4 * c + 1)
        a("v_cvt_pk_bf16_f32 v%d, v%d, v%d", 17 + 2 * c, ACC + 4 * c + 2, ACC + 4 * c + 3)
        a("ds_write_b64 v8, %s offset:%d", vr(16 + 2 * c, 2), 512 * c)
    a("s_lshl_b32 s62, s61, 10")
    a("v_lshlrev_b32 v1, 2, v4")
    a("v_add_u32 v1, s62, v1")
    a("v_add_u32 v2, %d, v1", 2 * CH)
    a("v_lshrrev_b32 v3, 2, v4")
    a("v_lshlrev_b32 v3, 14, v3")
    a("v_and_b32 v9, 3, v4")
    a("v_lshl_add_u32 v3, v9, 4, v3")
    a("s_lshl_b32 s62, s61, 20")
    a("s_lshl_b32 s63, s3, 6")
    a("s_add_u32 s62, s62, s63")
    a("v_add_u32 v3, s62, v3")
    a("s_mov_b32 s64, 0x40000")
    a("s_mov_b32 s65, 0x80000")
    a("s_mov_b32 s66, 0xc0000")
    a("s_mov_b32 s67, 0x05040100")
    a("s_mov_b32 s68, 0x07060302")
    a("s_waitcnt lgkmcnt(0)")
    a("s_barrier")
    Y = 48
    for n in range(4):
        for c in range(4):
            a("ds_read_b32 v%d, %s offset:%d", Y + 4 * n + c, "v1" if c < 2 else "v2", (c & 1) * CH + 256 * n)
    O = 80
    for n in range(4):
        a("s_waitcnt lgkmcnt(%d)", 4 * (3 - n))
        y = Y + 4 * n
        a("v_perm_b32 v%d, v%d, v%d, s67", O + 4 * n + 0, y + 1, y + 0)
        a("v_perm_b32 v%d, v%d, v%d, s67", O + 4 * n + 1, y + 3, y + 2)
        a("v_perm_b32 v%d, v%d, v%d, s68", O + 4 * n + 2, y + 1, y + 0)
        a("v_perm_b32 v%d, v%d, v%d, s68", O + 4 * n + 3, y + 3, y + 2)
        a("buffer_store_dwordx4 %s, v3, s[28:31], %s offen", vr(O + 4 * n, 4), soff[n])
    a.label("L_conv_end")
    a("s_endpgm")
    return a


def gen_ln():
    a = Asm()
    a("s_cmp_ge_u32 s2, 256")
    a("s_cbranch_scc1 L_ln_end")
    a("s_load_dwordx2 s[4:5], s[0:1], %d", KA["q"])
    a("s_load_dwordx2 s[6:7], s[0:1], %d", KA["ws"])
    a("v_and_b32 v1, 7, v0")
    a("v_lshrrev_b32 v2, 3, v0")
    a("s_lshl_b32 s3, s2, 14")
    a("v_lshlrev_b32 v3, 11, v1")
    a("v_lshl_add_u32 v3, v2, 4, v3")
    a("v_add_u32 v3, s3, v3")
    a("v_lshlrev_b32 v4, 7, v2")
    a("v_lshl_add_u32 v4, v1, 3, v4")
    a("v_add_u32 v4, s3, v4")
    a("s_lshr_b32 s8, s2, 2")
    a("s_lshl_b32 s8, s8, 16")
    a("s_and_b32 s9, s2, 3")
    a("s_lshl_b32 s9, s9, 7")
    a("s_add_u32 s8, s8, s9")
    a("v_lshlrev_b32 v5, 9, v2")
    a("v_lshl_add_u32 v5, v1, 4, v5")
    a("v_add_u32 v5, s8, v5")
    a("v_lshrrev_b32 v6, 6, v0")
    a("v_lshlrev_b32 v7, 5, v1")
    a("v_lshl_add_u32 v6, v6, 3, v7")
    a("s_mov_b32 s40, 4096")
    a("s_mov_b32 s41, 8192")
    a("s_mov_b32 s42, 12288")
    a("s_mov_b32 s43, 16384")
    a("s_mov_b32 s44, 32768")
    a("s_mov_b32 s45, 49152")
    a("s_waitcnt lgkmcnt(0)")
    srd(a, 16, 4, 0, S * D * 2)
    srd(a, 20, 6, WS_YB, S * D * 2)
    srd(a, 24, 6, WS_H, S * D * 2)
    srd(a, 28, 6, WS_XT, S * D * 2)
    XR, YR, XF, YF, T = 16, 32, 48, 80, 112
    for i in range(4):
        a("buffer_load_dwordx4 %s, v3, s[16:19], 0 offen offset:%d", vr(XR + 4 * i, 4), 512 * i)
    so = ["0", "s40", "s41", "s42"]
    for i in range(4):
        for hf in range(2):
            a("buffer_load_dwordx2 %s, v4, s[20:23], %s offen offset:%d", vr(YR + 4 * i + 2 * hf, 2), so[i], 64 * hf)

    def unpack(dst, src):
        a("v_lshlrev_b32 v%d, 16, v%d", dst, src)
        a("v_and_b32 v%d, 0xffff0000, v%d", dst + 1, src)

    def xreduce(r, t):
        a("v_add_f32_dpp v%d, v%d, v%d row_ror:8 row_mask:0xf bank_mask:0xf", r, r, r)
        a("v_mov_b32 v%d, v%d", t, r)
        a("v_permlane16_swap_b32 v%d, v%d", r, t)
        a("v_add_f32 v%d, v%d, v%d", r, r, t)
        a("v_mov_b32 v%d, v%d", t, r)
        a("v_permlane32_swap_b32 v%d, v%d", r, t)
        a("v_add_f32 v%d, v%d, v%d", r, r, t)

    def rbf(r):
        a("v_cvt_pk_bf16_f32 v%d, v%d, v%d", r, r, r)
        a("v_lshlrev_b32 v%d, 16, v%d", r, r)

    def stats(X, lds_off):
        for c in range(4):
            a("v_pk_add_f32 %s, %s, %s", vr(T + 2 * c, 2), vr(X + 2 * c, 2), vr(X + 8 + 2 * c, 2))
        for g in (16, 24):
            for c in range(4):
                a("v_pk_add_f32 %s, %s, %s", vr(T + 2 * c, 2), vr(T + 2 * c, 2), vr(X + g + 2 * c, 2))
        a("v_pk_add_f32 %s, %s, %s", vr(T, 2), vr(T, 2), vr(T + 2, 2))
        a("v_pk_add_f32 %s, %s, %s", vr(T + 4, 2), vr(T + 4, 2), vr(T + 6, 2))
        a("v_pk_add_f32 %s, %s, %s", vr(T, 2), vr(T, 2), vr(T + 4, 2))
        a("v_add_f32 v8, v%d, v%d", T, T + 1)
        xreduce(8, 9)
        a("v_mul_f32 v8, 0x3b800000, v8")
        a("v_mul_f32 v10, -1.0, v8")
        a("v_mov_b32 v11, v10")
        for g in range(4):
            for c in range(4):
                a("v_pk_add_f32 %s, %s, v[10:11]", vr(T + 8 + 2 * c, 2), vr(X + 8 * g + 2 * c, 2))
            for c in range(4):
                d = vr(T + 8 + 2 * c, 2)
                if g == 0:
                    a("v_pk_mul_f32 %s, %s, %s", vr(T + 2 * c, 2), d, d)
                else:
                    a("v_pk_fma_f32 %s, %s, %s, %s", vr(T + 2 * c, 2), d, d, vr(T + 2 * c, 2))
        a("v_pk_add_f32 %s, %s, %s", vr(T, 2), vr(T, 2), vr(T + 2, 2))
        a("v_pk_add_f32 %s, %s, %s", vr(T + 4, 2), vr(T + 4, 2), vr(T + 6, 2))
        a("v_pk_add_f32 %s, %s, %s", vr(T, 2), vr(T, 2), vr(T + 4, 2))
        a("v_add_f32 v9, v%d, v%d", T, T + 1)
        xreduce(9, 10)
        a("ds_write_b64 v6, v[8:9] offset:%d", lds_off)
        a("s_waitcnt lgkmcnt(0)")
        a("s_barrier")
        a("ds_read_b128 %s, v7 offset:%d", vr(T, 4), lds_off)
        a("ds_read_b128 %s, v7 offset:%d", vr(T + 4, 4), lds_off + 16)
        a("s_waitcnt lgkmcnt(0)")
        a("v_pk_add_f32 v[8:9], %s, %s", vr(T, 2), vr(T + 2, 2))
        a("v_pk_add_f32 v[10:11], %s, %s", vr(T + 4, 2), vr(T + 6, 2))
        a("v_pk_add_f32 v[8:9], v[8:9], v[10:11]")
        a("v_mul_f32 v8, 0x3e800000, v8")
        for c in range(4):
            a("v_sub_f32 v%d, v%d, v8", T + 2 * c, T + 2 * c)
        a("v_mul_f32 v10, v%d, v%d", T, T)
        for c in range(1, 4):
            a("v_fmac_f32 v10, v%d, v%d", T + 2 * c, T + 2 * c)
        a("v_fmac_f32 v9, 0x43800000, v10")
        a("v_mul_f32 v9, 0x3a800000, v9")
        rbf(8)
        rbf(9)
        a("v_add_f32 v9, 0x3727c5ac, v9")
        rbf(9)
        a("v_sqrt_f32 v9, v9")
        rbf(9)
        a("v_rcp_f32 v10, v9")
        a("v_mul_f32 v12, v8, v10")
        a("v_mov_b32 v11, v10")
        a("v_mul_f32 v12, -1.0, v12")
        a("v_mov_b32 v13, v12")

    a("s_waitcnt vmcnt(8)")
    for i in range(16):
        unpack(XF + 2 * i, XR + i)
    stats(XF, 0)
    a("s_waitcnt vmcnt(0)")
    for i in range(16):
        unpack(YF + 2 * i, YR + i)
    for i in range(16):
        t = vr(T + 2 * (i & 7), 2)
        a("v_pk_fma_f32 %s, %s, v[10:11], v[12:13]", t, vr(XF + 2 * i, 2))
        a("v_pk_fma_f32 %s, %s, %s, %s", vr(YF + 2 * i, 2), t, vr(YF + 2 * i, 2), vr(XF + 2 * i, 2))
    for i in range(16):
        a("v_cvt_pk_bf16_f32 v%d, v%d, v%d", XR + i, YF + 2 * i, YF + 2 * i + 1)
    for i in range(4):
        a("buffer_store_dwordx4 %s, v3, s[24:27], 0 offen offset:%d", vr(XR + 4 * i, 4), 512 * i)
    for i in range(16):
        unpack(XF + 2 * i, XR + i)
    stats(XF, 256)
    for i in range(16):
        a("v_pk_fma_f32 %s, %s, v[10:11], v[12:13]", vr(XF + 2 * i, 2), vr(XF + 2 * i, 2))
    for i in range(16):
        a("v_cvt_pk_bf16_f32 v%d, v%d, v%d", YR + i, XF + 2 * i, XF + 2 * i + 1)
    so = ["0", "s43", "s44", "s45"]
    for i in range(4):
        a("buffer_store_dwordx4 %s, v5, s[28:31], %s offen", vr(YR + 4 * i, 4), so[i])
    a.label("L_ln_end")
    a("s_endpgm")
    return a


G1_GRP = 2176
G1_UP = 1152
G1_STAGE = 8 * G1_GRP
G1_LDS = 8 * G1_STAGE


def gen_gemm1():
    a = Asm()
    NST = 32
    a("s_cmp_ge_u32 s2, 256")
    a("s_cbranch_scc1 L_g1_end")
    a("s_load_dwordx4 s[4:7], s[0:1], %d", KA["wg"])
    a("s_load_dwordx2 s[8:9], s[0:1], %d", KA["ws"])
    a("v_lshrrev_b32 v1, 6, v0")
    a("v_and_b32 v2, 63, v0")
    a("v_readfirstlane_b32 s33, v1")
    a("s_and_b32 s34, s2, 7")
    a("s_lshr_b32 s35, s2, 3")
    a("s_and_b32 s36, s35, 7")
    a("s_lshr_b32 s35, s35, 3")
    a("s_lshl_b32 s34, s34, 2")
    a("s_add_u32 s34, s34, s35")
    a("s_lshl_b32 s36, s36, 3")
    a("s_add_u32 s36, s36, s33")
    a("v_mul_u32_u24 v3, 4682, v2")
    a("v_lshrrev_b32 v3, 16, v3")
    a("v_mul_u32_u24 v4, 14, v3")
    a("v_sub_u32 v4, v2, v4")
    a("s_lshl_b32 s37, s33, 2")
    a("v_add_u32 v3, s37, v3")
    a("v_mul_u32_u24 v3, 7168, v3")
    a("v_lshl_add_u32 v3, v4, 4, v3")
    a("s_mul_i32 s37, s34, 224")
    a("v_add_u32 v3, s37, v3")
    a("v_mov_b32 v4, 0x7fff0000")
    a("v_cmp_le_u32 vcc, 56, v2")
    a("v_cndmask_b32 v3, v3, v4, vcc")
    a("s_lshl_b32 s37, s36, 16")
    a("v_lshlrev_b32 v4, 4, v2")
    a("v_add_u32 v4, s37, v4")
    a("v_lshrrev_b32 v5, 5, v2")
    a("v_mul_u32_u24 v5, %d, v5", 2 * G1_GRP)
    a("v_bfe_u32 v6, v2, 4, 1")
    a("v_mul_u32_u24 v6, %d, v6", G1_UP)
    a("v_add_u32 v5, v5, v6")
    a("v_bfe_u32 v6, v2, 2, 2")
    a("v_mul_u32_u24 v6, 224, v6")
    a("v_add_u32 v5, v5, v6")
    a("v_and_b32 v6, 3, v2")
    a("v_lshl_add_u32 v5, v6, 3, v5")
    a("s_mul_i32 s37, s36, 224")
    a("s_mul_i32 s38, s34, 7")
    a("s_add_u32 s37, s37, s38")
    a("s_lshl_b32 s37, s37, 10")
    a("v_lshlrev_b32 v6, 4, v2")
    a("v_add_u32 v6, s37, v6")
    a("s_mul_i32 s40, s33, %d", G1_GRP)
    a("s_add_u32 s41, s40, %d", G1_LDS)
    a("s_mov_b32 s42, 0")
    a("s_mov_b32 s43, 0")
    a("s_mov_b32 s44, %d", 4 * G1_STAGE)
    a("s_waitcnt lgkmcnt(0)")
    srd(a, 16, 4, 0, D * F * 2)
    srd(a, 20, 6, 0, D * F * 2)
    srd(a, 24, 8, WS_XT, S * D * 2)
    srd(a, 28, 8, WS_HH, S * F * 2)
    WF, XF, ACC = 8, 36, 68

    def issue_w():
        a("s_mov_b32 m0, s40")
        a("s_add_u32 s45, s40, %d", G1_UP)
        a("buffer_load_dwordx4 v3, s[16:19], s42 offen lds")
        a("s_mov_b32 m0, s45")
        a("s_add_u32 s40, s40, %d", G1_STAGE)
        a("buffer_load_dwordx4 v3, s[20:23], s42 offen lds")
        a("s_add_u32 s42, s42, %d", 32 * 7168)
        a("s_cmp_ge_u32 s40, s41")
        a("s_cselect_b32 s45, %d, 0", G1_LDS)
        a("s_sub_u32 s40, s40, s45")

    def issue_x(u, step):
        a("buffer_load_dwordx4 %s, v4, s[24:27], s43 offen offset:%d", vr(XF + 8 * u + 4 * step, 4), 1024 * step)
        if step:
            a("s_add_u32 s43, s43, 2048")

    def rd(u, step, ft, half):
        return "ds_read_b64_tr_b16 %s, v5 offset:%d" % (
            vr(WF + 4 * ft + 2 * half, 2), u * G1_STAGE + (4 * step + half) * G1_GRP + 32 * ft)

    issue_w()
    for u in range(4):
        issue_w()
        issue_x(u, 0)
        issue_x(u, 1)
    for i in range(112):
        a("v_mov_b32 v%d, 0", ACC + i)
    a("s_waitcnt vmcnt(16)")
    a("s_barrier")
    for ft in range(7):
        a(rd(0, 0, ft, 0))
        a(rd(0, 0, ft, 1))
    a("s_mov_b32 s46, 0")
    a.label("L_g1_loop")
    for u in range(4):
        a("s_waitcnt vmcnt(12)")
        a("s_barrier")
        issue_w()
        for step in range(2):
            if step == 1 and u == 3:
                a("v_add_u32 v5, s44, v5")
                a("s_sub_u32 s44, 0, s44")
            nu, ns = (u, 1) if step == 0 else ((u + 1) & 3, 0)
            for ft in range(7):
                a("s_waitcnt lgkmcnt(12)")
                acc = vr(ACC + 16 * ft, 16)
                a("v_mfma_f32_32x32x16_bf16 %s, %s, %s, %s", acc, vr(WF + 4 * ft, 4), vr(XF + 8 * u + 4 * step, 4), acc)
                a(rd(nu, ns, ft, 0))
                a(rd(nu, ns, ft, 1))
            if u == 0 and step == 0:
                a("s_cmp_eq_u32 s46, %d", NST // 4 - 1)
                a("s_cselect_b32 s43, 0x40000000, s43")
            issue_x(u, step)
    a("s_add_u32 s46, s46, 1")
    a("s_cmp_lt_u32 s46, %d", NST // 4)
    a("s_cbranch_scc1 L_g1_loop")
    c0 = -2.0 * 0.7978845608028654 * 1.4426950408889634
    c1 = c0 * 0.044715
    import struct
    f2u = lambda x: struct.unpack("<I", struct.pack("<f", x))[0]
    a("s_mov_b32 s50, 0x%x", f2u(c1))
    a("s_mov_b32 s51, 0x%x", f2u(c1))
    a("s_mov_b32 s54, 1.0")
    a("s_mov_b32 s55, 1.0")
    a("s_mov_b32 s52, 4096")
    a("s_waitcnt vmcnt(0) lgkmcnt(0)")
    a("v_mov_b32 v8, 0x%x", f2u(c0))
    a("v_mov_b32 v9, 0x%x", f2u(c0))
    T, O = 12, 36
    for ft in range(7):
        g = ACC + 16 * ft
        u_ = g + 8
        for p in range(4):
            a("v_pk_mul_f32 %s, %s, %s", vr(T + 2 * p, 2), vr(g + 2 * p, 2), vr(g + 2 * p, 2))
        for p in range(4):
            a("v_pk_fma_f32 %s, %s, s[50:51], v[8:9]", vr(T + 2 * p, 2), vr(T + 2 * p, 2))
        for p in range(4):
            a("v_pk_mul_f32 %s, %s, %s", vr(T + 2 * p, 2), vr(T + 2 * p, 2), vr(g + 2 * p, 2))
        for e in range(8):
            a("v_exp_f32 v%d, v%d", T + e, T + e)
        for p in range(4):
            a("v_pk_mul_f32 %s, %s, %s", vr(g + 2 * p, 2), vr(g + 2 * p, 2), vr(u_ + 2 * p, 2))
        for p in range(4):
            a("v_pk_add_f32 %s, %s, s[54:55]", vr(T + 2 * p, 2), vr(T + 2 * p, 2))
        for e in range(8):
            a("v_rcp_f32 v%d, v%d", T + e, T + e)
        for p in range(4):
            a("v_pk_mul_f32 %s, %s, %s", vr(g + 2 * p, 2), vr(g + 2 * p, 2), vr(T + 2 * p, 2))
        o = O + 4 * ft
        for p in range(4):
            a("v_cvt_pk_bf16_f32 v%d, v%d, v%d", o + p, g + 2 * p, g + 2 * p + 1)
        a("buffer_store_dwordx4 %s, v6, s[28:31], %s offen offset:%d", vr(o, 4), "0" if ft < 4 else "s52", 1024 * (ft & 3))
    a.label("L_g1_end")
    a("s_endpgm")
    return a


G2_STAGE = 16384
G2_LDS = 8 * G2_STAGE


def gen_gemm2():
    a = Asm()
    NST = 28
    a("s_cmp_ge_u32 s2, 256")
    a("s_cbranch_scc1 L_g2_end")
    a("s_load_dwordx4 s[4:7], s[0:1], %d", KA["wd"])
    a("s_load_dwordx2 s[8:9], s[0:1], %d", KA["ws"])
    a("v_lshrrev_b32 v1, 6, v0")
    a("v_and_b32 v2, 63, v0")
    a("v_readfirstlane_b32 s33, v1")
    a("s_and_b32 s34, s2, 7")
    a("s_lshr_b32 s35, s2, 3")
    a("s_lshr_b32 s36, s34, 1")
    a("s_lshl_b32 s36, s36, 2")
    a("s_and_b32 s37, s35, 3")
    a("s_add_u32 s36, s36, s37")
    a("s_and_b32 s34, s34, 1")
    a("s_lshl_b32 s34, s34, 3")
    a("s_lshr_b32 s35, s35, 2")
    a("s_add_u32 s34, s34, s35")
    a("s_and_b32 s37, s33, 3")
    a("s_lshr_b32 s38, s33, 2")
    a("s_lshl_b32 s36, s36, 2")
    a("s_add_u32 s36, s36, s37")
    a("v_lshrrev_b32 v3, 3, v2")
    a("v_bfe_u32 v4, v2, 4, 1")
    a("v_lshlrev_b32 v4, 2, v4")
    a("v_and_b32 v5, 7, v2")
    a("v_xor_b32 v4, v4, v5")
    a("s_lshl_b32 s39, s33, 4")
    a("v_add_u32 v3, s39, v3")
    a("v_lshlrev_b32 v3, 11, v3")
    a("v_lshl_add_u32 v3, v4, 4, v3")
    a("s_lshl_b32 s39, s34, 7")
    a("v_add_u32 v3, s39, v3")
    a("v_add_u32 v7, 16384, v3")
    a("s_mul_i32 s39, s36, 224")
    a("s_lshl_b32 s47, s38, 2")
    a("s_add_u32 s39, s39, s47")
    a("s_lshl_b32 s39, s39, 10")
    a("v_lshlrev_b32 v4, 4, v2")
    a("v_add_u32 v4, s39, v4")
    a("v_lshrrev_b32 v5, 5, v2")
    a("v_lshlrev_b32 v5, 2, v5")
    a("v_bfe_u32 v6, v2, 2, 2")
    a("v_add_u32 v5, v5, v6")
    a("s_lshl_b32 s39, s38, 6")
    a("v_add_u32 v5, s39, v5")
    a("v_lshlrev_b32 v5, 7, v5")
    a("v_bfe_u32 v6, v2, 4, 1")
    a("v_lshl_add_u32 v5, v6, 5, v5")
    a("v_and_b32 v6, 3, v2")
    a("v_lshl_add_u32 v5, v6, 3, v5")
    a("v_bfe_u32 v6, v2, 3, 1")
    a("v_lshl_add_u32 v5, v6, 6, v5")
    a("s_lshl_b32 s39, s38, 6")
    a("v_xor_b32 v5, s39, v5")
    a("v_xor_b32 v6, 64, v5")
    a("s_lshl_b32 s40, s33, 11")
    a("s_add_u32 s41, s40, %d", G2_LDS)
    a("s_mov_b32 s42, 0")
    a("s_mov_b32 s43, 0")
    a("s_mov_b32 s44, %d", 4 * G2_STAGE)
    a("s_waitcnt lgkmcnt(0)")
    srd(a, 16, 4, 0, F * D * 2)
    srd(a, 20, 6, 0, S * D * 2)
    srd(a, 24, 8, WS_HH, S * F * 2)
    srd(a, 28, 8, WS_H, S * D * 2)
    WF, XF, ACC, HR = 12, 28, 92, 124

    def issue_w():
        a("s_mov_b32 m0, s40")
        a("s_add_u32 s45, s40, 1024")
        a("buffer_load_dwordx4 v3, s[16:19], s42 offen lds")
        a("s_mov_b32 m0, s45")
        a("s_add_u32 s40, s40, %d", G2_STAGE)
        a("buffer_load_dwordx4 v7, s[16:19], s42 offen lds")
        a("s_add_u32 s42, s42, %d", 128 * 2048)
        a("s_cmp_ge_u32 s40, s41")
        a("s_cselect_b32 s45, %d, 0", G2_LDS)
        a("s_sub_u32 s40, s40, s45")

    def issue_x(u, q):
        a("buffer_load_dwordx4 %s, v4, s[24:27], s43 offen offset:%d", vr(XF + 16 * u + 4 * q, 4), 1024 * q)
        if q == 3:
            a("s_add_u32 s43, s43, 8192")

    def rd(u, q, nt, half):
        return "ds_read_b64_tr_b16 %s, %s offset:%d" % (
            vr(WF + 8 * (q & 1) + 4 * nt + 2 * half, 2), "v6" if nt else "v5",
            u * G2_STAGE + (16 * q + 8 * half) * 128)

    a("v_and_b32 v8, 31, v2")
    a("s_lshl_b32 s39, s36, 5")
    a("v_add_u32 v8, s39, v8")
    a("v_lshlrev_b32 v8, 11, v8")
    a("s_lshl_b32 s39, s34, 7")
    a("s_lshl_b32 s47, s38, 6")
    a("s_add_u32 s39, s39, s47")
    a("v_add_u32 v8, s39, v8")
    a("v_lshrrev_b32 v9, 5, v2")
    a("v_lshl_add_u32 v10, v9, 4, v8")
    a("v_lshl_add_u32 v8, v9, 3, v8")
    for q in range(4):
        a("buffer_load_dwordx2 %s, v8, s[28:31], 0 offen offset:%d", vr(HR + 2 * q, 2), 16 * q)
    issue_w()
    for u in range(4):
        issue_w()
        for q in range(4):
            issue_x(u, q)
    for i in range(32):
        a("v_mov_b32 v%d, 0", ACC + i)
    a("s_waitcnt vmcnt(24)")
    a("s_barrier")
    for q in range(2):
        for nt in range(2):
            a(rd(0, q, nt, 0))
            a(rd(0, q, nt, 1))
    a("s_mov_b32 s46, 0")
    a.label("L_g2_loop")
    for u in range(4):
        a("s_waitcnt vmcnt(18)")
        a("s_barrier")
        issue_w()
        for q in range(4):
            if q == 2 and u == 3:
                a("v_add_u32 v5, s44, v5")
                a("v_add_u32 v6, s44, v6")
                a("s_sub_u32 s44, 0, s44")
            nu, nq = (u, q + 2) if q < 2 else ((u + 1) & 3, q - 2)
            for nt in range(2):
                a("s_waitcnt lgkmcnt(6)")
                acc = vr(ACC + 16 * nt, 16)
                a("v_mfma_f32_32x32x16_bf16 %s, %s, %s, %s", acc, vr(WF + 8 * (q & 1) + 4 * nt, 4),
                  vr(XF + 16 * u + 4 * q, 4), acc)
                a(rd(nu, nq, nt, 0))
                a(rd(nu, nq, nt, 1))
            if u == 0 and q == 0:
                a("s_cmp_eq_u32 s46, %d", NST // 4 - 1)
                a("s_cselect_b32 s43, 0x40000000, s43")
            issue_x(u, q)
    a("s_add_u32 s46, s46, 1")
    a("s_cmp_lt_u32 s46, %d", NST // 4)
    a("s_cbranch_scc1 L_g2_loop")
    a("s_waitcnt vmcnt(0) lgkmcnt(0)")
    a("s_barrier")
    a("v_lshlrev_b32 v11, 4, v2")
    a("s_lshl_b32 s39, s33, 12")
    a("v_add_u32 v3, s39, v11")
    a("s_xor_b32 s39, s39, 0x4000")
    a("v_add_u32 v4, s39, v11")
    for q in range(4):
        a("ds_write_b128 v3, %s offset:%d", vr(ACC + 16 + 4 * q, 4), 1024 * q)
    a("s_waitcnt lgkmcnt(0)")
    a("s_barrier")
    R = 28
    for q in range(4):
        a("ds_read_b128 %s, v4 offset:%d", vr(R + 4 * q, 4), 1024 * q)
    HF = 48
    for q in range(4):
        for p in range(2):
            a("v_lshlrev_b32 v%d, 16, v%d", HF + 4 * q + 2 * p, HR + 2 * q + p)
            a("v_and_b32 v%d, 0xffff0000, v%d", HF + 4 * q + 2 * p + 1, HR + 2 * q + p)
    for p in range(8):
        a("v_pk_add_f32 %s, %s, %s", vr(ACC + 2 * p, 2), vr(ACC + 2 * p, 2), vr(HF + 2 * p, 2))
    a("s_waitcnt lgkmcnt(0)")
    for p in range(8):
        a("v_pk_add_f32 %s, %s, %s", vr(ACC + 2 * p, 2), vr(ACC + 2 * p, 2), vr(R + 2 * p, 2))
    O = 68
    for p in range(8):
        a("v_cvt_pk_bf16_f32 v%d, v%d, v%d", O + p, ACC + 2 * p, ACC + 2 * p + 1)
    for h in range(2):
        o = O + 4 * h
        a("v_permlane32_swap_b32 v%d, v%d", o, o + 2)
        a("v_permlane32_swap_b32 v%d, v%d", o + 1, o + 3)
        a("buffer_store_dwordx4 %s, v10, s[20:23], 0 offen offset:%d", vr(o, 4), 32 * h)
    a.label("L_g2_end")
    a("s_endpgm")
    return a


HEADER = open(os.path.join(os.path.dirname(os.path.abspath(__file__)), "..", "cdna_kernels",
                           "sequential_preLN__ssm_conv_h3__glu_gated_geglu__prompt.s.ref")).read().split("; Override")[0]


def build(path):
    ks = [
        ("conv_kernel", gen_conv(), 256, 256, CONV_LDS),
        ("ln_kernel", gen_ln(), 256, 256, 512),
        ("gemm1_kernel", gen_gemm1(), 256, 512, G1_LDS),
        ("gemm2_kernel", gen_gemm2(), 256, 512, G2_LDS),
    ]
    out = HEADER
    for name, _, g, b, lds in ks:
        out += "; @launch kernel=%s grid=(%d,1,1) block=(%d,1,1) lds=%d\n" % (name, g, b, lds)
    out += '.amdgcn_target "amdgcn-amd-amdhsa--gfx950"\n'
    descs = ""
    for name, a, g, b, lds in ks:
        code, desc, info = kernel_text(name, a)
        print(name, "vgpr/agpr/sgpr", info, "insts", len(a.ins), file=sys.stderr)
        out += code
        descs += desc
    out += descs
    open(path, "w").write(out)


if __name__ == "__main__":
    build(sys.argv[1] if len(sys.argv) > 1 else
          "sequential_preLN__ssm_conv_h3__glu_gated_geglu__prompt.s")
```

```python
import sys, os, struct
sys.path.insert(0, os.path.dirname(os.path.abspath(__file__)))
from asmlib import Asm, vr, sr, ar, kernel_text

S, D, F = 2048, 1024, 3584
MB = 1 << 20
WS_YB, WS_H, WS_XT, WS_UB, WS_WC, WS_HH, WS_ST = 0, 6 * MB, 10 * MB, 16 * MB, 20 * MB, 24 * MB, 64 * MB
BLK = 5120
XT_SZ, HH_SZ, WC_SZ = 32 * 32 * BLK, 32 * 112 * BLK, F * 512
KA = dict(q=0, k=8, v=16, shift=24, ssmk=32, ssmd=40, bx=48, wg=56, wu=64, wd=72, out=80, dbg=88, ws=96)
STAMP = bool(int(os.environ.get("STAMP", "0")))
EXP = os.environ.get("EXP", "").split(",")
P = dict(kv.split("=") for kv in os.environ.get("P", "").split(",") if kv)
geti = lambda k, d: int(P.get(k, d))
f2u = lambda x: struct.unpack("<I", struct.pack("<f", x))[0]
HERE = os.path.dirname(os.path.abspath(__file__))
HEADER = open(os.path.join(HERE, "..", "cdna_kernels",
                           "sequential_preLN__ssm_conv_h3__glu_gated_geglu__prompt.s.ref")).read().split("; Override")[0]
POS = [0, 1, 2, 4]


def srd(a, dst, ptr, off, size):
    if off:
        a("s_add_u32 s%d, s%d, 0x%x", dst, ptr, off)
        a("s_addc_u32 s%d, s%d, 0", dst + 1, ptr + 1)
    else:
        a("s_mov_b32 s%d, s%d", dst, ptr)
        a("s_mov_b32 s%d, s%d", dst + 1, ptr + 1)
    a("s_mov_b32 s%d, 0x%x", dst + 2, size)
    a("s_mov_b32 s%d, 0x20000", dst + 3)


def stamp(a, k):
    if STAMP:
        if k == 0:
            a("s_memrealtime s[96:97]")
        a("s_memtime s[%d:%d]", 80 + 2 * k, 81 + 2 * k)


def stamp_flush(a, kidx, wsptr, wave_sgpr):
    if not STAMP:
        return
    a("s_waitcnt vmcnt(0)")
    a("s_memtime s[94:95]")
    a("s_memrealtime s[98:99]")
    a("s_getreg_b32 s100, hwreg(HW_REG_XCC_ID)")
    a("s_getreg_b32 s101, hwreg(HW_REG_HW_ID)")
    srd(a, 76, wsptr, WS_ST + kidx * MB, MB)
    a("s_lshl_b32 s75, s2, 10")
    a("s_lshl_b32 s74, s%d, 7", wave_sgpr)
    a("s_add_u32 s75, s75, s74")
    a("v_mov_b32 v1, s75")
    a("s_waitcnt lgkmcnt(0)")
    for i in range(22):
        a("v_mov_b32 v2, s%d", 80 + i)
        a("buffer_store_dword v2, v1, s[76:79], 0 offen offset:%d", 4 * i)


def unpack(a, dst, src):
    a("v_lshlrev_b32 v%d, 16, v%d", dst, src)
    a("v_and_b32 v%d, 0xffff0000, v%d", dst + 1, src)


class VM:
    def __init__(self):
        self.q = []

    def issue(self, tag):
        self.q.append(tag)

    def need(self, tags):
        idx = [i for i, t in enumerate(self.q) if t in tags]
        assert len(set(self.q[i] for i in idx)) == len(set(tags)), (tags, self.q[-40:])
        n = len(self.q) - 1 - max(idx)
        assert n <= 63
        return n


class Null:
    def __call__(self, *a):
        pass


def frag_offsets(a, dst, lane, t0, t1):
    a("v_lshlrev_b32 v%d, 4, v%d", t0, lane)
    a("v_and_b32 v%d, 0x70, v%d", t1, t0)
    a("v_and_b32 v%d, 56, v%d", dst, lane)
    a("v_cmp_eq_u32 vcc, 24, v%d", dst)
    for j in range(4):
        a("v_add_u32 v%d, %d, v%d", dst + j, 1024 * j, t0)
    for j in range(4):
        a("v_add_u32 v%d, %d, v%d", t0, 4096 + 128 * POS[j], t1)
        a("v_cndmask_b32 v%d, v%d, v%d, vcc", dst + j, dst + j, t0)


def gen_pre():
    a = Asm()
    a("s_cmp_ge_u32 s2, 256")
    a("s_cbranch_scc1 L_pre_end")
    stamp(a, 0)
    a("s_load_dwordx4 s[4:7], s[0:1], %d", KA["k"])
    a("s_load_dwordx4 s[8:11], s[0:1], %d", KA["shift"])
    a("s_load_dwordx2 s[12:13], s[0:1], %d", KA["wd"])
    a("s_load_dwordx2 s[14:15], s[0:1], %d", KA["ws"])
    a("s_and_b32 s3, s2, 7")
    a("s_lshr_b32 s33, s2, 3")
    a("v_and_b32 v1, 7, v0")
    a("v_lshrrev_b32 v2, 3, v0")
    a("s_lshl_b32 s34, s3, 5")
    a("v_add_u32 v2, s34, v2")
    a("s_lshl_b32 s34, s33, 3")
    a("v_add_u32 v3, s34, v1")
    a("v_lshlrev_b32 v4, 14, v3")
    a("v_lshl_add_u32 v4, v2, 3, v4")
    a("v_subrev_u32 v5, 6144, v4")
    a("v_mov_b32 v6, 0x7fff0000")
    a("v_cmp_eq_u32 vcc, 0, v3")
    a("v_cndmask_b32 v5, v5, v6, vcc")
    a("v_lshlrev_b32 v6, 5, v2")
    a("v_lshlrev_b32 v7, 14, v2")
    a("v_lshlrev_b32 v8, 4, v3")
    a("v_sub_u32 v7, v7, v8")
    a("v_add_u32 v7, 4080, v7")
    a("s_mov_b32 s40, 4096")
    a("s_mov_b32 s41, 8192")
    a("s_mov_b32 s42, 12288")
    a("v_lshrrev_b32 v9, 6, v0")
    a("v_readfirstlane_b32 s35, v9")
    a("s_waitcnt lgkmcnt(0)")
    srd(a, 16, 4, 0, S * D * 2)
    srd(a, 20, 6, 0, S * D * 2)
    srd(a, 24, 8, 0, D * 8)
    KR, VR, WR = 10, 32, 48
    so = ["0", "s40", "s41", "s42"]
    a("buffer_load_dwordx4 %s, v6, s[24:27], 0 offen", vr(WR, 4))
    a("buffer_load_dwordx4 %s, v6, s[24:27], 0 offen offset:16", vr(WR + 4, 4))
    for j in range(3):
        a("buffer_load_dwordx2 %s, v5, s[16:19], %s offen offset:%d", vr(KR + 2 * j, 2), so[j >> 1], 2048 * (j & 1))
    for j in range(8):
        a("buffer_load_dwordx2 %s, v4, s[16:19], %s offen offset:%d", vr(KR + 6 + 2 * j, 2), so[j >> 1], 2048 * (j & 1))
        a("buffer_load_dwordx2 %s, v4, s[20:23], %s offen offset:%d", vr(VR + 2 * j, 2), so[j >> 1], 2048 * (j & 1))
    srd(a, 44, 12, 0, F * D * 2)
    a("v_lshrrev_b32 v8, 4, v0")
    a("s_mul_i32 s34, s2, 14")
    a("v_add_u32 v9, s34, v8")
    a("v_bfe_u32 v56, v0, 3, 1")
    a("v_and_b32 v57, 7, v0")
    a("v_lshlrev_b32 v58, 11, v9")
    a("v_lshl_add_u32 v58, v56, 10, v58")
    a("v_lshl_add_u32 v58, v57, 4, v58")
    a("v_add_u32 v58, 384, v58")
    a("v_lshlrev_b32 v59, 9, v9")
    a("v_lshl_add_u32 v59, v56, 8, v59")
    a("v_lshl_add_u32 v59, v57, 4, v59")
    a("v_mov_b32 v57, 0x7fff0000")
    a("v_cmp_le_u32 vcc, 14, v8")
    a("v_cndmask_b32 v58, v58, v57, vcc")
    a("v_cndmask_b32 v59, v59, v57, vcc")
    a("buffer_load_dwordx4 v[60:63], v58, s[44:47], 0 offen")
    srd(a, 48, 10, 0, D * S * 2)
    a("s_lshl_b32 s34, s3, 5")
    a("s_add_u32 s34, s34, s33")
    a("s_lshl_b32 s34, s34, 14")
    a("v_lshlrev_b32 v56, 6, v0")
    a("buffer_load_dword v64, v56, s[48:51], s34 offen")
    srd(a, 28, 14, WS_UB, S * D * 2)
    srd(a, 52, 14, WS_WC, WC_SZ)
    WTF, KF, VF, KS = 66, 84, 128, 160
    a("s_waitcnt vmcnt(21)")
    for c in range(4):
        for j in range(4):
            src = WR + 2 * c + (j >> 1)
            if j & 1:
                a("v_and_b32 v%d, 0xffff0000, v%d", WTF + 4 * j + c, src)
            else:
                a("v_lshlrev_b32 v%d, 16, v%d", WTF + 4 * j + c, src)
    a("s_waitcnt vmcnt(18)")
    stamp(a, 1)
    for j in range(3):
        unpack(a, KF + 4 * j, KR + 2 * j)
        unpack(a, KF + 4 * j + 2, KR + 2 * j + 1)
    for j in range(8):
        a("s_waitcnt vmcnt(%d)", 2 + 2 * (7 - j))
        unpack(a, KF + 4 * (j + 3), KR + 2 * (j + 3))
        unpack(a, KF + 4 * (j + 3) + 2, KR + 2 * (j + 3) + 1)
        unpack(a, VF + 4 * j, VR + 2 * j)
        unpack(a, VF + 4 * j + 2, VR + 2 * j + 1)
        for p in range(2):
            a("v_pk_mul_f32 %s, %s, %s", vr(KS + 2 * p, 2), vr(KF + 4 * j + 2 * p, 2), vr(WTF + 12 + 2 * p, 2))
        for tap in (2, 1, 0):
            for p in range(2):
                a("v_pk_fma_f32 %s, %s, %s, %s", vr(KS + 2 * p, 2), vr(KF + 4 * (j + 3 - tap) + 2 * p, 2),
                  vr(WTF + 4 * tap + 2 * p, 2), vr(KS + 2 * p, 2))
        for p in range(2):
            a("v_pk_mul_f32 %s, %s, %s", vr(VF + 4 * j + 2 * p, 2), vr(KS + 2 * p, 2), vr(VF + 4 * j + 2 * p, 2))
    stamp(a, 2)
    W = 12
    for c in range(4):
        for n in range(4):
            a("v_cvt_pk_bf16_f32 v%d, v%d, v%d", W + 4 * c + n, VF + 4 * (7 - 2 * n) + c, VF + 4 * (6 - 2 * n) + c)
        a("buffer_store_dwordx4 %s, v7, s[28:31], %s offen %s", vr(W + 4 * c, 4), so[c], P.get("umod", ""))
    a("s_waitcnt vmcnt(5)")
    a("buffer_store_dwordx4 v[60:63], v59, s[52:55], 0 offen sc1")
    stamp(a, 3)
    stamp_flush(a, 0, 14, 35)
    a.label("L_pre_end")
    a("s_endpgm")
    return a


HS, US = 4160, 5152
UOFF = 4 * HS
CH = UOFF + 2 * US
CONV_LDS = 4 * CH


def gen_conv():
    a = Asm()
    a("s_cmp_ge_u32 s2, 256")
    a("s_cbranch_scc1 L_conv_end")
    stamp(a, 0)
    a("s_load_dwordx4 s[8:11], s[0:1], %d", KA["ssmk"])
    a("s_load_dwordx2 s[14:15], s[0:1], %d", KA["ws"])
    a("s_load_dwordx2 s[4:5], s[0:1], %d", KA["q"])
    a("s_load_dwordx4 s[44:47], s[0:1], %d", KA["wg"])
    a("s_load_dwordx2 s[6:7], s[0:1], %d", KA["wd"])
    a("s_and_b32 s36, s2, 7")
    a("s_lshl_b32 s3, s36, 5")
    a("s_lshr_b32 s37, s2, 3")
    a("s_add_u32 s3, s3, s37")
    a("v_lshrrev_b32 v3, 6, v0")
    a("v_and_b32 v4, 63, v0")
    a("v_readfirstlane_b32 s61, v3")
    a("s_lshl_b32 s63, s3, 2")
    a("s_add_u32 s63, s63, s61")
    a("s_lshl_b32 s62, s63, 12")
    a("v_lshlrev_b32 v9, 4, v4")
    a("v_add_u32 v6, s62, v9")
    a("v_subrev_u32 v7, 8, v6")
    a("v_mov_b32 v5, 0x7fff0000")
    a("v_cmp_eq_u32 vcc, 0, v4")
    a("v_cndmask_b32 v8, v7, v5, vcc")
    a("v_add_u32 v7, 8, v6")
    a("s_mul_i32 s60, s61, %d", CH)
    a("v_add_u32 v9, s60, v9")
    a("s_lshl_b32 s38, s3, 3")
    a("s_movk_i32 s39, 4096")
    a("s_waitcnt lgkmcnt(0)")
    srd(a, 24, 8, 0, D * S * 2)
    srd(a, 16, 14, WS_UB, 0)
    a("s_add_u32 s18, s62, 4096")
    HP = 48
    for i in range(4):
        a("buffer_load_dwordx2 %s, %s, s[24:27], 0 offen offset:%d", vr(HP + 6 * i, 2), "v8" if i == 0 else "v6",
          0 if i == 0 else 1024 * i - 8)
        a("buffer_load_dwordx4 %s, v6, s[24:27], 0 offen offset:%d", vr(HP + 6 * i + 2, 4), 1024 * i)
    a("s_load_dwordx2 s[40:41], s[10:11], s38")
    for p in (1, 0):
        a("s_add_u32 m0, s60, %d", UOFF + p * US)
        for i in range(4):
            a("buffer_load_dwordx4 %s, s[16:19], 0 offen offset:%d lds", "v6" if p else "v7", 1024 * i)
        a("s_add_u32 m0, s60, %d", UOFF + p * US + 4096)
        a("buffer_load_dwordx4 %s, s[16:19], s39 offen lds", "v6" if p else "v7")
    a("v_mov_b32 v72, 0")
    a("v_mov_b32 v73, 0")
    a("v_bfe_u32 v75, v4, 3, 2")
    a("v_mul_u32_u24 v75, %d, v75", HS)
    a("v_and_b32 v76, 7, v4")
    a("v_min_u32 v76, 5, v76")
    a("v_lshl_add_u32 v75, v76, 3, v75")
    a("v_add_u32 v75, s60, v75")
    a("ds_write_b64 v75, v[72:73]")
    a("v_and_b32 v10, 3, v4")
    a("v_mul_u32_u24 v10, %d, v10", HS)
    a("v_bfe_u32 v11, v4, 2, 2")
    a("v_lshrrev_b32 v12, 4, v4")
    a("v_add_u32 v11, v11, v12")
    a("v_lshl_add_u32 v10, v11, 4, v10")
    a("v_add_u32 v5, s60, v10")
    a("v_and_b32 v10, 1, v4")
    a("v_bfe_u32 v11, v4, 1, 3")
    a("v_mul_u32_u24 v13, %d, v10", US)
    a("v_lshlrev_b32 v14, 2, v11")
    a("v_sub_u32 v15, v12, v14")
    a("v_add_u32 v15, 28, v15")
    a("v_lshl_add_u32 v13, v15, 4, v13")
    a("v_add_u32 v1, s60, v13")
    a("v_add_u32 v14, v14, v12")
    a("v_lshlrev_b32 v15, 4, v14")
    a("v_lshl_add_u32 v15, v10, 3, v15")
    a("v_add_u32 v2, s60, v15")
    a("v_sub_u32 v15, %d, v15", 31 * 16 + 8)
    a("v_add_u32 v3, s60, v15")
    srd(a, 28, 14, WS_YB, S * D * 2)
    srd(a, 48, 4, 0, S * D * 2)
    srd(a, 52, 44, 0, D * F * 2)
    srd(a, 56, 46, 0, D * F * 2)
    srd(a, 64, 6, 0, F * D * 2)
    a("v_lshlrev_b32 v226, 6, v0")
    a("s_lshl_b32 s68, s2, 14")
    a("v_lshrrev_b32 v227, 3, v0")
    a("v_mul_u32_u24 v227, 7168, v227")
    a("v_and_b32 v228, 7, v0")
    a("v_min_u32 v228, 6, v228")
    a("v_lshl_add_u32 v227, v228, 7, v227")
    a("s_mul_i32 s69, s37, %d", 32 * 7168)
    a("s_mul_i32 s70, s36, 896")
    a("s_add_u32 s69, s69, s70")
    a("v_min_u32 v228, 223, v0")
    a("v_lshlrev_b32 v228, 7, v228")
    a("s_mul_i32 s70, s2, 28672")
    for i in range(4):
        a("s_waitcnt vmcnt(%d)", 10 + 2 * (3 - i))
        if i == 0:
            stamp(a, 1)
        M0, M1, P0, P1, P2, P3 = [HP + 6 * i + x for x in range(6)]
        T = 84 + 12 * i
        base = 48 + 1024 * i
        a("ds_write_b128 v9, %s offset:%d", vr(P0, 4), base + 3 * HS)
        for n, (hi, lo) in enumerate([(M1, M0), (P0, M1), (P1, P0), (P2, P1)]):
            a("v_alignbit_b32 v%d, v%d, v%d, 16", T + n, hi, lo)
        a("ds_write_b128 v9, %s offset:%d", vr(T, 4), base + 0 * HS)
        for n, src in enumerate([M1, P0, P1, P2]):
            a("v_mov_b32 v%d, v%d", T + 4 + n, src)
        a("ds_write_b128 v9, %s offset:%d", vr(T + 4, 4), base + 1 * HS)
        for n, (hi, lo) in enumerate([(P0, M1), (P1, P0), (P2, P1), (P3, P2)]):
            a("v_alignbit_b32 v%d, v%d, v%d, 16", T + 8 + n, hi, lo)
        a("ds_write_b128 v9, %s offset:%d", vr(T + 8, 4), base + 2 * HS)
    stamp(a, 2)
    a("s_waitcnt vmcnt(0) lgkmcnt(0)")
    stamp(a, 3)
    a("s_cmp_ge_u32 s61, 2")
    a("s_cselect_b32 s42, s41, s40")
    a("s_and_b32 s43, s61, 1")
    a("s_xor_b32 s43, s43, 1")
    a("s_lshl_b32 s43, s43, 4")
    a("s_lshl_b32 s42, s42, s43")
    a("s_and_b32 s42, s42, 0xffff0000")
    a("s_mov_b32 s43, s42")
    AB = [16, 48]
    BB = [80, 112]
    ACC, UE, UF = 144, 176, 192

    def reads(kp):
        buf = kp & 1
        A = lambda t: "ds_read_b128 %s, v5 offset:%d" % (vr(AB[buf] + 4 * t, 4), 512 * t + 64 * kp)
        B = lambda c: "ds_read_b128 %s, v1 offset:%d" % (vr(BB[buf] + 4 * c, 4), UOFF + 3584 - 512 * c + 64 * kp)
        return [A(0)] + [B(c) for c in range(8)] + [A(t) for t in range(1, 8)]

    touches = []
    if geti("pf", 1):
        touches = ["buffer_load_dword v224, v228, s[64:67], s70 offen",
                   "buffer_load_dword v224, v227, s[52:55], s69 offen",
                   "buffer_load_dword v224, v227, s[56:59], s69 offen",
                   "buffer_load_dword v224, v226, s[48:51], s68 offen"]
    for r in reads(0):
        a(r)
    for kp in range(8):
        buf = kp & 1
        fill = reads(kp + 1) if kp < 7 else []
        extra = []
        if kp == 7:
            fill = ["ds_read_b64 %s, v3 offset:%d" % (vr(UE + 2 * c, 2), UOFF + US + 3584 - 512 * c) for c in range(8)]
            for c in range(8):
                extra.append("v_and_b32 v%d, 0xffff0000, v%d" % (UF + 4 * c + 0, UE + 2 * c + 1))
                extra.append("v_lshlrev_b32 v%d, 16, v%d" % (UF + 4 * c + 1, UE + 2 * c + 1))
                extra.append("v_and_b32 v%d, 0xffff0000, v%d" % (UF + 4 * c + 2, UE + 2 * c))
                extra.append("v_lshlrev_b32 v%d, 16, v%d" % (UF + 4 * c + 3, UE + 2 * c))
        if kp == 0:
            a("s_waitcnt lgkmcnt(7)")
        else:
            a("s_waitcnt lgkmcnt(0)")
        n = 0
        waited = False
        for t in range(8):
            if kp == 0 and t == 1:
                a("s_waitcnt lgkmcnt(4)")
            cs = range(8 - t) if t % 2 == 0 else range(7 - t, -1, -1)
            for c in cs:
                acc = vr(ACC + 4 * (t + c), 4)
                src = "0" if (kp == 0 and t == 0) else acc
                a("v_mfma_f32_16x16x32_bf16 %s, %s, %s, %s", acc, vr(AB[buf] + 4 * t, 4), vr(BB[buf] + 4 * c, 4), src)
                n += 1
                if fill and (n % 2 == 0 or kp == 7):
                    a(fill.pop(0))
                elif extra and not fill and n >= 18:
                    if not waited:
                        a("s_waitcnt lgkmcnt(0)")
                        waited = True
                    a(extra.pop(0))
                    if extra:
                        a(extra.pop(0))
                if n == 35 and touches:
                    a(touches.pop(0))
        assert not fill
        for e in extra:
            a(e)
    stamp(a, 4)
    for c in range(8):
        for p in range(2):
            r = ACC + 4 * c + 2 * p
            a("v_pk_fma_f32 %s, %s, s[42:43], %s", vr(r, 2), vr(UF + 4 * c + 2 * p, 2), vr(r, 2))
        a("v_cvt_pk_bf16_f32 v%d, v%d, v%d", 16 + 2 * c, ACC + 4 * c, ACC + 4 * c + 1)
        a("v_cvt_pk_bf16_f32 v%d, v%d, v%d", 17 + 2 * c, ACC + 4 * c + 2, ACC + 4 * c + 3)
        a("ds_write_b64 v2, %s offset:%d", vr(16 + 2 * c, 2), 512 * c)
    a("s_lshl_b32 s62, s61, 10")
    a("v_lshlrev_b32 v1, 2, v4")
    a("v_add_u32 v1, s62, v1")
    a("v_add_u32 v2, %d, v1", 2 * CH)
    a("v_lshrrev_b32 v3, 2, v4")
    a("v_lshlrev_b32 v3, 14, v3")
    a("v_and_b32 v9, 3, v4")
    a("v_lshl_add_u32 v3, v9, 4, v3")
    a("s_lshl_b32 s62, s61, 20")
    a("s_lshl_b32 s63, s3, 6")
    a("s_add_u32 s62, s62, s63")
    a("v_add_u32 v3, s62, v3")
    a("s_mov_b32 s20, 0x40000")
    a("s_mov_b32 s21, 0x80000")
    a("s_mov_b32 s22, 0xc0000")
    a("s_mov_b32 s67, 0x05040100")
    a("s_mov_b32 s68, 0x07060302")
    a("s_waitcnt lgkmcnt(0)")
    a("s_barrier")
    Y = 48
    for n in range(4):
        for c in range(4):
            a("ds_read_b32 v%d, %s offset:%d", Y + 4 * n + c, "v1" if c < 2 else "v2", (c & 1) * CH + 256 * n)
    O = 80
    so = ["0", "s20", "s21", "s22"]
    for n in range(4):
        a("s_waitcnt lgkmcnt(%d)", 4 * (3 - n))
        y = Y + 4 * n
        a("v_perm_b32 v%d, v%d, v%d, s67", O + 4 * n + 0, y + 1, y + 0)
        a("v_perm_b32 v%d, v%d, v%d, s67", O + 4 * n + 1, y + 3, y + 2)
        a("v_perm_b32 v%d, v%d, v%d, s68", O + 4 * n + 2, y + 1, y + 0)
        a("v_perm_b32 v%d, v%d, v%d, s68", O + 4 * n + 3, y + 3, y + 2)
        a("buffer_store_dwordx4 %s, v3, s[28:31], %s offen %s", vr(O + 4 * n, 4), so[n], P.get("ymod", ""))
    stamp(a, 5)
    stamp_flush(a, 1, 14, 61)
    a.label("L_conv_end")
    a("s_endpgm")
    return a


def gen_ln():
    a = Asm()
    a("s_cmp_ge_u32 s2, 256")
    a("s_cbranch_scc1 L_ln_end")
    stamp(a, 0)
    a("s_load_dwordx2 s[4:5], s[0:1], %d", KA["q"])
    a("s_load_dwordx2 s[6:7], s[0:1], %d", KA["ws"])
    a("v_and_b32 v1, 7, v0")
    a("v_lshrrev_b32 v2, 3, v0")
    a("s_lshl_b32 s3, s2, 14")
    a("v_lshlrev_b32 v3, 11, v1")
    a("v_lshl_add_u32 v3, v2, 4, v3")
    a("v_lshlrev_b32 v4, 7, v2")
    a("v_lshl_add_u32 v4, v1, 3, v4")
    a("s_add_u32 s40, s3, 8192")
    a("s_waitcnt lgkmcnt(0)")
    srd(a, 16, 4, 0, S * D * 2)
    srd(a, 20, 6, WS_YB, S * D * 2)
    XR, YR, XF, YF, T = 16, 24, 32, 48, 64
    for i in range(2):
        a("buffer_load_dwordx4 %s, v3, s[16:19], s3 offen offset:%d", vr(XR + 4 * i, 4), 1024 * i)
    for i in range(2):
        for hf in range(2):
            a("buffer_load_dwordx2 %s, v4, s[20:23], %s offen offset:%d", vr(YR + 4 * i + 2 * hf, 2),
              "s40" if i else "s3", 64 * hf)
    srd(a, 24, 6, WS_H, S * D * 2)
    srd(a, 28, 6, WS_XT, XT_SZ)
    a("s_lshr_b32 s8, s2, 3")
    a("s_mul_i32 s8, s8, %d", 32 * BLK)
    a("s_add_u32 s41, s8, %d", 16 * BLK)
    a("s_bfe_u32 s9, s2, 0x20001")
    a("s_and_b32 s10, s2, 1")
    a("s_lshl_b32 s11, s9, 10")
    a("s_lshl_b32 s12, s10, 7")
    a("s_add_u32 s11, s11, s12")
    a("s_cmp_eq_u32 s9, 3")
    a("s_cselect_b32 s12, 4, s9")
    a("s_lshl_b32 s12, s12, 7")
    a("s_add_u32 s12, s12, 4096")
    a("s_add_u32 s13, s11, 256")
    a("s_cmp_eq_u32 s10, 1")
    a("s_cselect_b32 s12, s12, s13")
    a("v_and_b32 v6, 3, v2")
    a("v_lshlrev_b32 v5, 8, v6")
    a("v_add_u32 v5, s11, v5")
    a("v_mov_b32 v7, s12")
    a("v_cmp_eq_u32 vcc, 1, v6")
    a("v_cndmask_b32 v5, v5, v7, vcc")
    a("v_lshl_add_u32 v5, v1, 4, v5")
    a("v_lshrrev_b32 v6, 2, v2")
    a("v_mul_u32_u24 v6, %d, v6", BLK)
    a("v_add_u32 v5, v5, v6")
    a("v_lshrrev_b32 v6, 6, v0")
    a("v_readfirstlane_b32 s33, v6")
    a("v_lshlrev_b32 v7, 6, v1")
    a("v_lshl_add_u32 v6, v6, 3, v7")

    def rbf(r):
        a("v_cvt_pk_bf16_f32 v%d, v%d, v%d", r, r, r)
        a("v_lshlrev_b32 v%d, 16, v%d", r, r)

    def stats(X, lds_off, between=None):
        for c in range(2):
            a("v_pk_add_f32 %s, %s, %s", vr(T + 2 * c, 2), vr(X + 2 * c, 2), vr(X + 4 + 2 * c, 2))
            a("v_pk_mul_f32 %s, %s, %s", vr(T + 4 + 2 * c, 2), vr(X + 2 * c, 2), vr(X + 2 * c, 2))
        for g in (4, 8, 12):
            for c in range(2):
                x = vr(X + g + 2 * c, 2)
                if g > 4:
                    a("v_pk_add_f32 %s, %s, %s", vr(T + 2 * c, 2), vr(T + 2 * c, 2), x)
                a("v_pk_fma_f32 %s, %s, %s, %s", vr(T + 4 + 2 * c, 2), x, x, vr(T + 4 + 2 * c, 2))
        a("v_pk_add_f32 %s, %s, %s", vr(T, 2), vr(T, 2), vr(T + 2, 2))
        a("v_pk_add_f32 %s, %s, %s", vr(T + 4, 2), vr(T + 4, 2), vr(T + 6, 2))
        a("v_add_f32 v8, v%d, v%d", T, T + 1)
        a("v_add_f32 v9, v%d, v%d", T + 4, T + 5)
        for r in (8, 9):
            a("v_add_f32_dpp v%d, v%d, v%d row_ror:8 row_mask:0xf bank_mask:0xf", r, r, r)
        for op in ("v_permlane16_swap_b32", "v_permlane32_swap_b32"):
            a("v_mov_b32 v10, v8")
            a("v_mov_b32 v11, v9")
            a("%s v8, v10", op)
            a("%s v9, v11", op)
            a("v_pk_add_f32 v[8:9], v[8:9], v[10:11]")
        a("ds_write_b64 v6, v[8:9] offset:%d", lds_off)
        a("s_waitcnt lgkmcnt(0)")
        a("s_barrier")
        for i in range(4):
            a("ds_read_b128 %s, v7 offset:%d", vr(T + 4 * i, 4), lds_off + 16 * i)
        if between:
            between()
        a("s_waitcnt lgkmcnt(0)")
        for i in range(4):
            a("v_pk_add_f32 %s, %s, %s", vr(T + 4 * i, 2), vr(T + 4 * i, 2), vr(T + 4 * i + 2, 2))
        a("v_pk_add_f32 %s, %s, %s", vr(T, 2), vr(T, 2), vr(T + 4, 2))
        a("v_pk_add_f32 %s, %s, %s", vr(T + 8, 2), vr(T + 8, 2), vr(T + 12, 2))
        a("v_pk_add_f32 v[8:9], %s, %s", vr(T, 2), vr(T + 8, 2))
        a("v_mul_f32 v8, 0x3a800000, v8")
        a("v_mul_f32 v9, 0x3a800000, v9")
        a("v_fma_f32 v9, -v8, v8, v9")
        a("v_max_f32 v9, 0, v9")
        a("v_cvt_pk_bf16_f32 v8, v8, v9")
        a("v_and_b32 v9, 0xffff0000, v8")
        a("v_lshlrev_b32 v8, 16, v8")
        a("v_add_f32 v9, 0x3727c5ac, v9")
        rbf(9)
        a("v_sqrt_f32 v9, v9")
        rbf(9)
        a("v_rcp_f32 v10, v9")
        a("v_rcp_f32 v11, v9")
        a("v_mul_f32_e64 v12, -v8, v10")
        a("v_mul_f32_e64 v13, -v8, v10")

    a("s_waitcnt vmcnt(4)")
    stamp(a, 1)
    for i in range(8):
        unpack(a, XF + 2 * i, XR + i)

    def y_unpack():
        a("s_waitcnt vmcnt(0)")
        for i in range(8):
            unpack(a, YF + 2 * i, YR + i)

    stats(XF, 0, y_unpack)
    stamp(a, 2)
    for i in range(8):
        a("v_pk_fma_f32 %s, %s, v[10:11], v[12:13]", vr(T + 2 * i, 2), vr(XF + 2 * i, 2))
    for i in range(8):
        a("v_pk_fma_f32 %s, %s, %s, %s", vr(YF + 2 * i, 2), vr(T + 2 * i, 2), vr(YF + 2 * i, 2), vr(XF + 2 * i, 2))
    for i in range(8):
        a("v_cvt_pk_bf16_f32 v%d, v%d, v%d", XR + i, YF + 2 * i, YF + 2 * i + 1)
    for i in range(8):
        unpack(a, XF + 2 * i, XR + i)

    def h_store():
        for i in range(2):
            a("buffer_store_dwordx4 %s, v3, s[24:27], s3 offen offset:%d %s", vr(XR + 4 * i, 4), 1024 * i, P.get("xmod", ""))

    stats(XF, 512, h_store)
    stamp(a, 3)
    for i in range(8):
        a("v_pk_fma_f32 %s, %s, v[10:11], v[12:13]", vr(XF + 2 * i, 2), vr(XF + 2 * i, 2))
    for i in range(8):
        a("v_cvt_pk_bf16_f32 v%d, v%d, v%d", YR + i, XF + 2 * i, XF + 2 * i + 1)
    for i in range(2):
        a("buffer_store_dwordx4 %s, v5, s[28:31], %s offen %s", vr(YR + 4 * i, 4), "s41" if i else "s8", P.get("xmod", ""))
    stamp(a, 4)
    stamp_flush(a, 2, 6, 33)
    a.label("L_ln_end")
    a("s_endpgm")
    return a


def place_loads(gaps, items, slots):
    place = {}
    for i, it in enumerate(items):
        sl = slots[(i * len(slots)) // len(items)]
        assert sl not in place
        place[sl] = it
    prev = -1
    for sl in sorted(place):
        for k, pi in enumerate(reversed(place[sl][0])):
            g = min(max(prev + 1, sl - 1 - k, 0), sl)
            gaps[g].insert(0, pi)
        prev = sl
    return place


def run_pipeline(a, vm, stage, waits, nst, label, pre_loop, post_body):
    stage(a, 0, [("X", 1), ("W", 2), ("X", 2)], False)
    stage(a, 1, [("W", 3), ("X", 3), ("W", 4)], False)
    stage(a, 2, [("X", 4), ("W", 5), ("X", 5), ("W", 6)], False)
    stage(a, 3, [("W", 7), ("X", 6)], False)
    pre_loop()
    a.label(label)
    w0 = len(waits)
    sv = list(vm.q)
    for tau in range(4, nst - 4):
        stage(Null(), tau, [("W", tau + 4), ("X", tau + 3)], True)
    steady = waits[w0:]
    body = [min(steady[u::4]) for u in range(4)]
    end_q = list(vm.q)
    vm.q = sv
    real_need = vm.need
    for tau in range(4, 8):
        vm.need = lambda tags, v=body[tau & 3]: v
        stage(a, tau, [("W", tau + 4), ("X", tau + 3)], True)
    vm.need = real_need
    vm.q = end_q
    post_body()
    a("s_add_u32 s46, s46, 4")
    a("s_cmp_lt_u32 s46, %d", nst - 4)
    a("s_cbranch_scc1 %s", label)


G1_GP = 1088
G1_UP = 8 * G1_GP
G1_STAGE = 16 * G1_GP
G1_LDS = 8 * G1_STAGE


def gen_gemm1():
    a = Asm()
    NST = 32
    a("s_cmp_ge_u32 s2, 256")
    a("s_cbranch_scc1 L_g1_end")
    stamp(a, 0)
    a("s_load_dwordx4 s[4:7], s[0:1], %d", KA["wg"])
    a("s_load_dwordx2 s[8:9], s[0:1], %d", KA["ws"])
    a("v_lshrrev_b32 v1, 6, v0")
    a("v_and_b32 v2, 63, v0")
    a("v_readfirstlane_b32 s33, v1")
    a("s_and_b32 s34, s2, 7")
    a("s_lshr_b32 s35, s2, 3")
    a("s_and_b32 s36, s35, 7")
    a("s_lshr_b32 s35, s35, 3")
    a("s_lshl_b32 s34, s34, 2")
    a("s_add_u32 s34, s34, s35")
    if geti("g1rot", 0):
        a("s_mul_i32 s37, s36, %d", geti("g1phi", 1))
        a("v_add_u32 v7, s37, v2")
        a("s_lshl_b32 s37, s35, 1")
        a("v_add_u32 v8, s37, v7")
        a("v_and_b32 v7, 24, v7")
        a("v_and_b32 v8, 7, v8")
        a("v_or_b32 v7, v7, v8")
    else:
        a("v_mov_b32 v7, v2")
    a("v_mul_u32_u24 v3, 4682, v2")
    a("v_lshrrev_b32 v3, 16, v3")
    a("v_mul_u32_u24 v4, 14, v3")
    a("v_sub_u32 v4, v2, v4")
    a("s_lshl_b32 s37, s33, 3")
    a("v_add_u32 v3, s37, v3")
    a("v_mul_u32_u24 v3, 7168, v3")
    a("v_lshl_add_u32 v3, v4, 4, v3")
    a("s_mul_i32 s37, s34, 224")
    a("v_add_u32 v3, s37, v3")
    a("v_mov_b32 v4, 0x7fff0000")
    a("v_cmp_le_u32 vcc, 56, v2")
    a("v_cndmask_b32 v3, v3, v4, vcc")
    a("v_add_u32 v4, %d, v3", 4 * 7168)
    frag_offsets(a, 8, 2, 12, 13)
    a("s_lshl_b32 s38, s36, 2")
    a("s_add_u32 s38, s38, s33")
    a("s_mul_i32 s59, s38, %d", 32 * BLK)
    a("s_mul_i32 s40, s33, %d", 2 * G1_GP)
    a("s_mov_b32 s58, 0x40000000")
    a("s_waitcnt lgkmcnt(0)")
    srd(a, 16, 4, 0, D * F * 2)
    srd(a, 20, 6, 0, D * F * 2)
    srd(a, 24, 8, WS_XT, XT_SZ)
    WF, XF, ACC = 0, 32, 32
    vm = VM()

    def w_items(n, inloop):
        it = []
        for k in range(4):
            pre = []
            if k == 0:
                if inloop:
                    pre.append("s_add_u32 s47, s46, %d" % (4 + (n & 3)))
                    pre.append("v_readlane_b32 s48, v7, s47")
                else:
                    pre.append("v_readlane_b32 s48, v7, %d" % n)
                pre.append("s_mul_i32 s42, s48, %d" % (32 * 7168))
            off = (n & 3) * G1_STAGE + (k >> 1) * G1_UP + (k & 1) * G1_GP
            if inloop:
                pre.append("s_add_u32 m0, s41, %d" % off)
            else:
                pre.append("s_add_u32 m0, s40, %d" % (off + ((n >> 2) & 1) * 4 * G1_STAGE))
            ld = "buffer_load_dwordx4 %s, %s, s42 offen lds" % ("v4" if k & 1 else "v3", "s[20:23]" if k >> 1 else "s[16:19]")
            it.append((pre, ld, ("W", n)))
        return it

    def x_items(n, inloop):
        it = []
        for j in range(4):
            pre = []
            if j == 0:
                if inloop:
                    pre.append("s_add_u32 s47, s46, %d" % (3 + ((n - 3) & 3)))
                    pre.append("v_readlane_b32 s49, v7, s47")
                else:
                    pre.append("v_readlane_b32 s49, v7, %d" % n)
                pre.append("s_mul_i32 s43, s49, %d" % BLK)
                pre.append("s_add_u32 s43, s43, s59")
            ld = "buffer_load_dwordx4 %s, v%d, s[24:27], s43 offen" % (ar(XF + 16 * (n & 3) + 4 * j, 4), 8 + j)
            it.append((pre, ld, ("X", n)))
        return it

    def emit_load(e, it):
        if ("no" + it[2][0]) in EXP:
            e(it[1].replace("s42", "s58").replace("s43", "s58"))
        else:
            e(it[1])
        vm.issue(it[2])

    fb = lambda tau, n: WF + 4 * ((14 * (tau & 3) + n) % 8)

    def rd(tau, n, hh):
        p, up = n >> 1, n & 1
        off = (tau & 3) * G1_STAGE + up * G1_UP + hh * G1_GP + (0 if p == 6 else 32 * p)
        return "ds_read_b64_tr_b16 %s, %s offset:%d" % (ar(fb(tau, n) + 2 * hh, 2), "v6" if p == 6 else "v5", off)

    waits = []

    def stage(e, tau, lst, inloop):
        last = tau == NST - 1
        gaps = [[] for _ in range(56)]
        for n in range(14):
            if n < 7:
                t2, n2 = tau, n + 7
            elif not last:
                t2, n2 = tau + 1, n - 7
            else:
                continue
            gaps[4 * n].append(rd(t2, n2, 0))
            gaps[4 * n + 1].append(rd(t2, n2, 1))
        if (tau & 3) == 3 and not last:
            gaps[4 * 6 + 2] += ["v_add_u32 v5, s44, v5", "v_add_u32 v6, s44, v6"]
            gaps[4 * 7 + 2] += ["s_sub_u32 s44, 0, s44"]
        for n in range(1, 13, 2):
            hi = min(n + 7, 13) if last else n + 7
            gaps[4 * n + 3].append("s_waitcnt lgkmcnt(%d)" % (2 * (hi - (n + 2))))
        g = [w_items(n, inloop) if k == "W" else x_items(n, inloop) for k, n in lst]
        items = [x for pair in zip(*g) for x in pair] if len(g) == 2 else [x for y in g for x in y]
        slots = sorted([4 * n + 2 for n in range(14)] + [4 * n + 3 for n in range(0, 14, 2)])
        if len(items) <= 12:
            slots = [4 * n + 2 for n in range(1, 14)]
        place = place_loads(gaps, items, slots) if items else {}
        n_ = vm.need([("X", tau)] + ([("W", tau + 1)] if not last else []))
        waits.append(n_)
        e("s_waitcnt vmcnt(%d) lgkmcnt(10)" % n_)
        if not last and "nobar" not in EXP:
            e("s_barrier")
        for i in range(56):
            n, c = i >> 2, i & 3
            j = c if n % 2 == 0 else 3 - c
            acc = vr(ACC + 4 * (4 * n + j), 4)
            e("v_mfma_f32_16x16x32_bf16 %s, %s, %s, %s" % (
                acc, ar(fb(tau, n), 4), ar(XF + 16 * (tau & 3) + 4 * j, 4), "0" if tau == 0 else acc))
            for f in gaps[i]:
                e(f)
            if i in place:
                emit_load(e, place[i])

    for it in w_items(0, False) + x_items(0, False) + w_items(1, False):
        for p in it[0]:
            a(p)
        emit_load(a, it)
    a("v_lshrrev_b32 v5, 4, v2")
    a("v_mul_u32_u24 v5, %d, v5", 2 * G1_GP)
    a("v_bfe_u32 v6, v2, 2, 2")
    a("v_mul_u32_u24 v6, 224, v6")
    a("v_add_u32 v5, v5, v6")
    a("v_and_b32 v6, 3, v2")
    a("v_lshl_add_u32 v5, v6, 3, v5")
    a("s_and_b32 s39, s34, 1")
    a("s_xor_b32 s37, s39, 1")
    a("s_mul_i32 s37, s37, 192")
    a("v_add_u32 v6, s37, v5")
    a("s_lshl_b32 s37, s39, 5")
    a("v_add_u32 v5, s37, v5")
    a("s_mov_b32 s44, %d", 4 * G1_STAGE)
    srd(a, 28, 8, WS_HH, HH_SZ)
    a("s_mul_i32 s37, s34, 7")
    a("s_add_u32 s52, s37, s39")
    a("s_lshr_b32 s52, s52, 1")
    a("s_mul_i32 s37, s38, 112")
    a("s_add_u32 s52, s52, s37")
    a("s_mul_i32 s52, s52, %d", BLK)
    a("s_add_u32 s53, s52, %d", BLK)
    a("s_add_u32 s56, s52, %d", 2 * BLK)
    a("s_add_u32 s57, s52, %d", 3 * BLK)
    a("s_sub_u32 s37, s52, %d", BLK - 8)
    a("s_cmp_eq_u32 s39, 0")
    a("s_cselect_b32 s57, s57, s37")
    a("s_waitcnt vmcnt(%d)" % vm.need([("W", 0)]))
    a("s_barrier")
    for n in range(7):
        a(rd(0, n, 0))
        a(rd(0, n, 1))
    stamp(a, 1)

    def pre_loop():
        a("s_mov_b32 s46, 4")
        a("s_mov_b32 s41, s40")
        a("s_lshl_b32 s45, s40, 1")
        a("s_add_u32 s45, s45, %d", 4 * G1_STAGE)

    run_pipeline(a, vm, stage, waits, NST, "L_g1_loop", pre_loop, lambda: a("s_sub_u32 s41, s45, s41"))
    stage(a, 28, [("X", 31)], False)
    stage(a, 29, [], False)
    stage(a, 30, [], False)
    stage(a, 31, [], False)
    stamp(a, 2)
    c0 = -2.0 * 0.7978845608028654 * 1.4426950408889634
    c1 = c0 * 0.044715
    a("s_mov_b32 s50, 0x%x", f2u(c1))
    a("s_mov_b32 s51, 0x%x", f2u(c1))
    a("s_mov_b32 s54, 1.0")
    a("s_mov_b32 s55, 1.0")
    a("v_mov_b32 v12, 0x%x", f2u(c0))
    a("v_mov_b32 v13, 0x%x", f2u(c0))
    acc = lambda n, j: ACC + 4 * (4 * n + j)
    smod = P.get("hhmod", "sc1").replace("+", " ")

    def act(gs, us, T):
        for p in range(4):
            a("v_pk_mul_f32 %s, %s, %s", vr(T + 2 * p, 2), vr(gs[p], 2), vr(gs[p], 2))
        for p in range(4):
            a("v_pk_fma_f32 %s, %s, s[50:51], v[12:13]", vr(T + 2 * p, 2), vr(T + 2 * p, 2))
        for p in range(4):
            a("v_pk_mul_f32 %s, %s, %s", vr(T + 2 * p, 2), vr(T + 2 * p, 2), vr(gs[p], 2))
        for e in range(8):
            a("v_exp_f32 v%d, v%d", T + e, T + e)
        for p in range(4):
            a("v_pk_mul_f32 %s, %s, %s", vr(gs[p], 2), vr(gs[p], 2), vr(us[p], 2))
        for p in range(4):
            a("v_pk_add_f32 %s, %s, s[54:55]", vr(T + 2 * p, 2), vr(T + 2 * p, 2))
        for e in range(8):
            a("v_rcp_f32 v%d, v%d", T + e, T + e)
        for p in range(4):
            a("v_pk_mul_f32 %s, %s, %s", vr(gs[p], 2), vr(gs[p], 2), vr(T + 2 * p, 2))

    so = ["s52", "s53", "s56"]
    for m in range(3):
        for j in range(4):
            g0, u0, g1, u1 = acc(4 * m, j), acc(4 * m + 1, j), acc(4 * m + 2, j), acc(4 * m + 3, j)
            gs = [g0, g0 + 2, g1, g1 + 2]
            act(gs, [u0, u0 + 2, u1, u1 + 2], 16)
            for p in range(4):
                a("v_cvt_pk_bf16_f32 v%d, v%d, v%d", g0 + p, gs[p], gs[p] + 1)
            a("buffer_store_dwordx4 %s, v%d, s[28:31], %s offen %s", vr(g0, 4), 8 + j, so[m], smod)
    for jj in range(2):
        g0, u0, g1, u1 = acc(12, 2 * jj), acc(13, 2 * jj), acc(12, 2 * jj + 1), acc(13, 2 * jj + 1)
        gs = [g0, g0 + 2, g1, g1 + 2]
        act(gs, [u0, u0 + 2, u1, u1 + 2], 16)
        for p in range(4):
            a("v_cvt_pk_bf16_f32 v%d, v%d, v%d", g0 + p, gs[p], gs[p] + 1)
        a("buffer_store_dwordx2 %s, v%d, s[28:31], s57 offen %s", vr(g0, 2), 8 + 2 * jj, smod)
        a("buffer_store_dwordx2 %s, v%d, s[28:31], s57 offen %s", vr(g0 + 2, 2), 9 + 2 * jj, smod)
    stamp(a, 3)
    stamp_flush(a, 3, 8, 33)
    a.label("L_g1_end")
    a("s_endpgm")
    return a


G2_STAGE = 16384
G2_LDS = 8 * G2_STAGE


def gen_gemm2():
    a = Asm()
    NST = 28
    a("s_cmp_ge_u32 s2, 256")
    a("s_cbranch_scc1 L_g2_end")
    stamp(a, 0)
    a("s_load_dwordx4 s[4:7], s[0:1], %d", KA["wd"])
    a("s_load_dwordx2 s[8:9], s[0:1], %d", KA["ws"])
    a("v_lshrrev_b32 v1, 6, v0")
    a("v_and_b32 v2, 63, v0")
    a("v_readfirstlane_b32 s33, v1")
    a("s_and_b32 s32, s2, 7")
    a("s_lshr_b32 s35, s2, 3")
    a("s_and_b32 s37, s35, 3")
    a("s_lshr_b32 s35, s35, 2")
    a("s_lshr_b32 s36, s32, 1")
    a("s_lshl_b32 s36, s36, 2")
    a("s_add_u32 s36, s36, s37")
    a("s_and_b32 s34, s32, 1")
    a("s_lshl_b32 s34, s34, 3")
    a("s_add_u32 s34, s34, s35")
    phi_a, phi_x, rho_a, rho_b = geti("phia", 0), geti("phix", 0), geti("rhoa", 0), geti("rhob", 0)
    if phi_a or phi_x or rho_a or rho_b:
        a("s_mul_i32 s39, s37, %d", phi_a)
        if phi_x:
            a("s_mul_i32 s47, s32, 7")
            a("s_lshr_b32 s47, s47, 1")
            a("s_add_u32 s39, s39, s47")
        a("v_add_u32 v7, s39, v2")
        a("v_mul_u32_u24 v8, 2341, v7")
        a("v_lshrrev_b32 v8, 16, v8")
        a("v_mul_u32_u24 v8, 28, v8")
        a("v_sub_u32 v7, v7, v8")
        a("v_mul_u32_u24 v8, 9363, v7")
        a("v_lshrrev_b32 v8, 16, v8")
        a("v_mul_u32_u24 v8, 7, v8")
        a("v_sub_u32 v7, v7, v8")
        a("s_mul_i32 s39, s37, %d", rho_a)
        a("s_mul_i32 s47, s35, %d", rho_b)
        a("s_add_u32 s39, s39, s47")
        a("v_add_u32 v7, s39, v7")
        a("v_mul_u32_u24 v9, 9363, v7")
        a("v_lshrrev_b32 v9, 16, v9")
        a("v_mul_u32_u24 v9, 7, v9")
        a("v_sub_u32 v7, v7, v9")
        a("v_add_u32 v7, v7, v8")
    else:
        a("v_mov_b32 v7, v2")
    a("s_and_b32 s37, s33, 1")
    a("s_lshr_b32 s38, s33, 1")
    a("s_lshl_b32 s36, s36, 1")
    a("s_add_u32 s36, s36, s37")
    a("s_cmp_eq_u32 s35, %d", 3 if geti("wc", 1) else 99)
    a("s_cselect_b32 s60, 9, 11")
    a("s_lshl_b32 s39, s34, 7")
    a("s_lshr_b32 s47, s34, 3")
    a("s_lshl_b32 s47, s47, 8")
    a("s_cmp_eq_u32 s60, 9")
    a("s_cselect_b32 s61, s47, s39")
    a("s_add_u32 s62, s60, 7")
    a("v_lshrrev_b32 v3, 3, v2")
    a("v_bfe_u32 v4, v2, 4, 2")
    a("v_lshlrev_b32 v4, 1, v4")
    a("v_and_b32 v5, 7, v2")
    a("v_xor_b32 v4, v4, v5")
    a("v_lshlrev_b32 v4, 4, v4")
    a("v_add_u32 v4, s61, v4")
    a("s_lshl_b32 s39, s33, 5")
    a("v_add_u32 v3, s39, v3")
    for i in range(4):
        a("v_add_u32 v5, %d, v3", 8 * i)
        a("v_lshlrev_b32 v5, s60, v5")
        a("v_add_u32 v%d, v5, v4", 12 + i)
    frag_offsets(a, 8, 2, 3, 4)
    a("s_mul_i32 s59, s36, 112")
    a("s_lshl_b32 s47, s38, 1")
    a("s_add_u32 s59, s59, s47")
    a("s_mul_i32 s59, s59, %d", BLK)
    a("s_lshl_b32 s40, s33, 12")
    a("s_mov_b32 s58, 0x40000000")
    a("s_waitcnt lgkmcnt(0)")
    a("s_add_u32 s10, s8, 0x%x", WS_WC)
    a("s_addc_u32 s11, s9, 0")
    a("s_cmp_eq_u32 s60, 9")
    a("s_cselect_b32 s16, s10, s4")
    a("s_cselect_b32 s17, s11, s5")
    a("s_cselect_b32 s18, 0x%x, s58", WC_SZ)
    a("s_min_u32 s18, s18, 0x%x", F * D * 2)
    a("s_mov_b32 s19, 0x20000")
    srd(a, 24, 8, WS_HH, HH_SZ)
    WF, XF, ACC, HR = 0, 64, 32, 96
    NB = 16
    vm = VM()

    def w_items(n, inloop):
        it = []
        for k in range(4):
            pre = []
            if k == 0:
                if inloop:
                    pre.append("s_add_u32 s47, s46, %d" % (4 + (n & 3)))
                    pre.append("v_readlane_b32 s48, v7, s47")
                else:
                    pre.append("v_readlane_b32 s48, v7, %d" % n)
                pre.append("s_lshl_b32 s42, s48, s62")
            off = (n & 3) * G2_STAGE + k * 1024
            if inloop:
                pre.append("s_add_u32 m0, s41, %d" % off)
            else:
                pre.append("s_add_u32 m0, s40, %d" % (off + ((n >> 2) & 1) * 4 * G2_STAGE))
            it.append((pre, "buffer_load_dwordx4 v%d, s[16:19], s42 offen lds" % (12 + k), ("W", n)))
        return it

    def x_items(n, inloop):
        it = []
        for q in range(2):
            for j in range(4):
                pre = []
                if q == 0 and j == 0:
                    if inloop:
                        pre.append("s_add_u32 s47, s46, %d" % (3 + ((n - 3) & 3)))
                        pre.append("v_readlane_b32 s49, v7, s47")
                    else:
                        pre.append("v_readlane_b32 s49, v7, %d" % n)
                    pre.append("s_mul_i32 s43, s49, %d" % (4 * BLK))
                    pre.append("s_add_u32 s43, s43, s59")
                if q == 1 and j == 0:
                    pre.append("s_add_u32 s43, s43, %d" % BLK)
                ld = "buffer_load_dwordx4 %s, v%d, s[24:27], s43 offen" % (ar(XF + 32 * (n & 3) + 16 * q + 4 * j, 4), 8 + j)
                it.append((pre, ld, ("X", n)))
        return it

    def emit_load(e, it):
        if ("no" + it[2][0]) in EXP:
            e(it[1].replace("s42", "s58").replace("s43", "s58"))
        else:
            e(it[1])
        vm.issue(it[2])

    DIST = 6
    fb = lambda tau, n: WF + 4 * ((8 * tau + n) % NB)

    def rd(tau, n, hh):
        q, t = n >> 2, n & 3
        off = (tau & 3) * G2_STAGE + (32 * q + 16 * hh) * 128
        return "ds_read_b64_tr_b16 %s, v%d offset:%d" % (ar(fb(tau, n) + 2 * hh, 2), 16 + t, off)

    waits = []

    def stage(e, tau, lst, inloop):
        last = tau == NST - 1
        gaps = [[] for _ in range(32)]
        for n in range(8):
            t2, n2 = (tau, n + DIST) if n + DIST < 8 else (tau + 1, n + DIST - 8)
            if t2 >= NST:
                continue
            gaps[4 * n].append(rd(t2, n2, 0))
            gaps[4 * n + 1].append(rd(t2, n2, 1))
        if (tau & 3) == 3 and not last:
            k = 4 * (7 - DIST) + 2
            gaps[k] += ["v_add_u32 v16, s44, v16", "v_add_u32 v17, s44, v17"]
            gaps[k + 1] += ["v_add_u32 v18, s44, v18", "v_add_u32 v19, s44, v19"]
            gaps[k + 4] += ["s_sub_u32 s44, 0, s44"]
        for n in range(1, 7, 2):
            hi = min(n + DIST, 7) if last else n + DIST
            gaps[4 * n + 3].append("s_waitcnt lgkmcnt(%d)" % (2 * (hi - (n + 2))))
        items = []
        for k, n in lst:
            items += w_items(n, inloop) if k == "W" else x_items(n, inloop)
        slots = list(range(2, 32)) if len(items) > 15 else [g for g in range(2, 32) if g % 4 >= 2]
        place = place_loads(gaps, items, slots) if items else {}
        n_ = vm.need([("X", tau)] + ([("W", tau + 1)] if not last else []))
        waits.append(n_)
        e("s_waitcnt vmcnt(%d) lgkmcnt(%d)" % (n_, 2 * (DIST - 2)))
        if not last and "nobar" not in EXP:
            e("s_barrier")
        for i in range(32):
            n, c = i >> 2, i & 3
            q, t = n >> 2, n & 3
            j = c if n % 2 == 0 else 3 - c
            acc = vr(ACC + 4 * (4 * t + j), 4)
            e("v_mfma_f32_16x16x32_bf16 %s, %s, %s, %s" % (
                acc, ar(fb(tau, n), 4), ar(XF + 32 * (tau & 3) + 16 * q + 4 * j, 4),
                "0" if (tau == 0 and q == 0) else acc))
            for f in gaps[i]:
                e(f)
            if i in place:
                emit_load(e, place[i])

    for it in w_items(0, False) + x_items(0, False) + w_items(1, False):
        for p in it[0]:
            a(p)
        emit_load(a, it)
    a("v_lshrrev_b32 v3, 2, v2")
    a("s_lshl_b32 s39, s38, 6")
    a("v_add_u32 v4, s39, v3")
    a("v_lshlrev_b32 v4, 7, v4")
    a("v_and_b32 v5, 3, v2")
    a("v_lshl_add_u32 v4, v5, 3, v4")
    a("v_bfe_u32 v3, v2, 3, 2")
    a("v_lshlrev_b32 v3, 5, v3")
    a("v_xor_b32 v3, s39, v3")
    for t in range(4):
        a("v_xor_b32 v5, %d, v3", 32 * t)
        a("v_add_u32 v%d, v4, v5", 16 + t)
    a("s_mov_b32 s44, %d", 4 * G2_STAGE)
    srd(a, 20, 6, 0, S * D * 2)
    srd(a, 28, 8, WS_H, S * D * 2)
    a("v_and_b32 v6, 15, v2")
    a("s_lshl_b32 s39, s36, 6")
    a("v_add_u32 v6, s39, v6")
    a("v_lshlrev_b32 v6, 11, v6")
    a("s_lshl_b32 s39, s34, 7")
    a("s_lshl_b32 s47, s38, 6")
    a("s_add_u32 s39, s39, s47")
    a("v_add_u32 v6, s39, v6")
    a("v_bfe_u32 v5, v2, 4, 1")
    a("v_lshl_add_u32 v6, v5, 5, v6")
    a("v_lshrrev_b32 v5, 5, v2")
    a("v_lshl_add_u32 v6, v5, 4, v6")
    a("s_mov_b32 s52, 32768")
    a("s_mov_b32 s53, 65536")
    a("s_mov_b32 s54, 98304")
    a("s_waitcnt vmcnt(%d)" % vm.need([("W", 0)]))
    a("s_barrier")
    for n in range(DIST):
        a(rd(0, n, 0))
        a(rd(0, n, 1))
    stamp(a, 1)

    def pre_loop():
        a("s_mov_b32 s46, 4")
        a("s_mov_b32 s41, s40")
        a("s_lshl_b32 s45, s40, 1")
        a("s_add_u32 s45, s45, %d", 4 * G2_STAGE)

    run_pipeline(a, vm, stage, waits, NST, "L_g2_loop", pre_loop, lambda: a("s_sub_u32 s41, s45, s41"))
    stage(a, 24, [("X", 27)], False)
    so = ["0", "s52", "s53", "s54"]
    for j in range(4):
        a("buffer_load_dwordx4 %s, v6, s[28:31], %s offen", vr(HR + 4 * j, 4), so[j])
        vm.issue(("H", j))
    stage(a, 25, [], False)
    stage(a, 26, [], False)
    stage(a, 27, [], False)
    stamp(a, 2)
    a("v_lshlrev_b32 v11, 4, v2")
    a("s_lshl_b32 s39, s33, 13")
    a("s_add_u32 s39, s39, %d", 4 * G2_STAGE)
    a("v_add_u32 v3, s39, v11")
    a("s_xor_b32 s39, s39, 0x4000")
    a("v_add_u32 v4, s39, v11")
    for i in range(8):
        a("ds_write_b128 v3, %s offset:%d", vr(ACC + 32 + 4 * i, 4), 1024 * i)
    HF = 112
    a("s_waitcnt vmcnt(0)")
    for i in range(16):
        unpack(a, HF + 2 * i, HR + i)
    a("s_waitcnt lgkmcnt(0)")
    a("s_barrier")
    R = 144
    for j in range(4):
        for t in range(2):
            i = 4 * t + j
            a("ds_read_b128 %s, v4 offset:%d", vr(R + 4 * i, 4), 1024 * i)
    for j in range(4):
        a("s_waitcnt lgkmcnt(%d)", 2 * (3 - j))
        t0, t1 = ACC + 4 * j, ACC + 16 + 4 * j
        for t, b in ((0, t0), (1, t1)):
            for p in range(2):
                a("v_pk_add_f32 %s, %s, %s", vr(b + 2 * p, 2), vr(b + 2 * p, 2), vr(R + 4 * (4 * t + j) + 2 * p, 2))
        for r in range(4):
            a("v_permlane16_swap_b32 v%d, v%d", t0 + r, t1 + r)
        for t, b in ((0, t0), (1, t1)):
            for p in range(2):
                a("v_pk_add_f32 %s, %s, %s", vr(b + 2 * p, 2), vr(b + 2 * p, 2), vr(HF + 8 * j + 4 * t + 2 * p, 2))
        a("v_cvt_pk_bf16_f32 v%d, v%d, v%d", t0, t0, t0 + 1)
        a("v_cvt_pk_bf16_f32 v%d, v%d, v%d", t0 + 1, t0 + 2, t0 + 3)
        a("v_cvt_pk_bf16_f32 v%d, v%d, v%d", t0 + 2, t1, t1 + 1)
        a("v_cvt_pk_bf16_f32 v%d, v%d, v%d", t0 + 3, t1 + 2, t1 + 3)
        a("buffer_store_dwordx4 %s, v6, s[20:23], %s offen %s", vr(t0, 4), so[j], P.get("omod", ""))
    stamp(a, 3)
    stamp_flush(a, 4, 8, 33)
    a.label("L_g2_end")
    a("s_endpgm")
    return a


def build(path):
    ks = [
        ("pre_kernel", gen_pre(), 256, 256, 0),
        ("conv_kernel", gen_conv(), 256, 256, CONV_LDS),
        ("ln_kernel", gen_ln(), 256, 512, 1024),
        ("gemm1_kernel", gen_gemm1(), 256, 256, G1_LDS),
        ("gemm2_kernel", gen_gemm2(), 256, 256, G2_LDS),
    ]
    out = HEADER
    for name, _, g, b, lds in ks:
        out += "; @launch kernel=%s grid=(%d,1,1) block=(%d,1,1) lds=%d\n" % (name, g, b, lds)
    out += '.amdgcn_target "amdgcn-amd-amdhsa--gfx950"\n'
    descs = ""
    for name, a, g, b, lds in ks:
        code, desc, info = kernel_text(name, a)
        print(name, "vgpr/agpr/sgpr", info, "insts", len(a.ins), file=sys.stderr)
        out += code
        descs += desc
    out += descs
    open(path, "w").write(out)


if __name__ == "__main__":
    build(sys.argv[1] if len(sys.argv) > 1 else
          "sequential_preLN__ssm_conv_h3__glu_gated_geglu__prompt.s")
```

```python
import sys, os, struct
sys.path.insert(0, os.path.dirname(os.path.abspath(__file__)))
from asmlib import Asm, vr, sr, ar, kernel_text

S, D, F = 2048, 1024, 3584
MB = 1 << 20
WS_YB, WS_H, WS_XT, WS_UB, WS_WC, WS_FL, WS_HH, WS_ST = 0, 6 * MB, 10 * MB, 46 * MB, 20 * MB, 23 * MB, 24 * MB, 64 * MB
BLK = 5120
HH_SPLIT = 96 * BLK
HH_BLK = HH_SPLIT + 16 * 8192
XT_SZ, HH_SZ, WC_SZ, FL_SZ = 32 * 32 * BLK, 32 * HH_BLK, F * 512, 16384
UB_SZ = YB_SZ = 1024 * BLK
STAMP = bool(int(os.environ.get("STAMP", "0")))
FUSED = bool(int(os.environ.get("FUSED", "1")))
EXP = os.environ.get("EXP", "").split(",")
P = dict(kv.split("=") for kv in os.environ.get("P", "").split(",") if kv)
geti = lambda k, d: int(P.get(k, d))
f2u = lambda x: struct.unpack("<I", struct.pack("<f", x))[0]
HERE = os.path.dirname(os.path.abspath(__file__))
NAME = "sequential_preLN__ssm_conv_h3__glu_gated_geglu__prompt"
HEADER = open(os.path.join(HERE, "..", "cdna_kernels", NAME + ".s.ref")).read().split("; Override")[0]
POS = [0, 1, 2, 4]
PQ, PK, PV, PSH, PSK, PSD, PWG, PWU, PWD, POUT, PWS = 8, 10, 12, 14, 16, 18, 22, 24, 26, 28, 32
XCD, IDX, WAVE, TAG = "s3", "s4", "s5", "s34"
R0, R1, R2, R3, R4, R5, RF = 36, 40, 44, 48, 52, 56, 60
q4 = lambda r: "s[%d:%d]" % (r, r + 3)
NT = P.get("nt", "nt")
SC = "sc1" if FUSED else ""
FM = P.get("fm", "sc1").replace("+", " ")
XA = 192

HS, US = 4160, 4576
UOFF = 4 * HS
CH = UOFF + 2 * US
L_KT = 4 * CH
L_VT = L_KT + 68 * 256
G1_GP = 1088
G1_UP = 8 * G1_GP
G1_STAGE = 16 * G1_GP
G1_LDS = 8 * G1_STAGE
G2_STAGE = 16384
L_ST = G1_LDS
LDS_ALL = 10 * G2_STAGE
assert L_VT + 16384 <= L_ST


def srd(a, dst, ptr, off, size):
    if off:
        a("s_add_u32 s%d, s%d, 0x%x", dst, ptr, off)
        a("s_addc_u32 s%d, s%d, 0", dst + 1, ptr + 1)
    else:
        a("s_mov_b32 s%d, s%d", dst, ptr)
        a("s_mov_b32 s%d, s%d", dst + 1, ptr + 1)
    a("s_mov_b32 s%d, 0x%x", dst + 2, size)
    a("s_mov_b32 s%d, 0x20000", dst + 3)


def stamp(a, k):
    if STAMP:
        a("s_memtime s[96:97]")
        a("s_memrealtime s[98:99]")
        a("s_waitcnt lgkmcnt(0)")
        a("v_writelane_b32 v31, s96, %d", k)
        a("v_writelane_b32 v31, s98, %d", 32 + k)


def stamp_flush(a, kidx, k):
    if not STAMP:
        return
    a("s_waitcnt vmcnt(0)")
    stamp(a, k)
    srd(a, R0, PWS, WS_ST + kidx * MB, MB)
    a("s_lshl_b32 s64, s2, 10")
    a("v_lshlrev_b32 v2, 2, v0")
    a("buffer_store_dword v31, v2, %s, s64 offen", q4(R0))


def unpack(a, dst, src):
    a("v_lshlrev_b32 v%d, 16, v%d", dst, src)
    a("v_and_b32 v%d, 0xffff0000, v%d", dst + 1, src)


class VM:
    def __init__(self):
        self.q = []

    def issue(self, tag):
        self.q.append(tag)

    def need(self, tags):
        idx = [i for i, t in enumerate(self.q) if t in tags]
        assert len(set(self.q[i] for i in idx)) == len(set(tags)), (tags, self.q[-40:])
        n = len(self.q) - 1 - max(idx)
        assert n <= 63
        return n


class Null:
    def __call__(self, *a):
        pass


def prologue(a, end):
    a("s_cmp_ge_u32 s2, 256")
    a("s_cbranch_scc1 %s", end)
    if FUSED:
        a("s_getpc_b64 s[6:7]")
        a.label("L_pc")
    a("s_load_dwordx16 s[8:23], s[0:1], 0")
    a("s_load_dwordx8 s[24:31], s[0:1], 64")
    a("s_load_dwordx2 s[32:33], s[0:1], 96")
    a("v_lshrrev_b32 v2, 6, v0")
    a("v_and_b32 v1, 63, v0")
    a("v_readfirstlane_b32 s5, v2")
    a("s_and_b32 s3, s2, 7")
    a("s_lshr_b32 s4, s2, 3")
    a("s_and_b32 s35, s4, 7")
    a("s_lshl_b32 s35, s35, 3")
    a("s_add_u32 s35, s35, s3")
    a("s_lshl_b32 s35, s35, 2")
    a("s_lshr_b32 s64, s4, 3")
    a("s_add_u32 s35, s35, s64")
    if STAMP:
        a("v_mov_b32 v31, 0")
        stamp(a, 0)


def line_offset(a, dst, line, t):
    a("s_lshr_b32 s%d, s%d, 3", t, line)
    a("s_cmp_eq_u32 s%d, 3", t)
    a("s_cselect_b32 s%d, 4, s%d", t, t)
    a("s_add_u32 s%d, s%d, 32", t, t)
    a("s_and_b32 s%d, s%d, 7", dst, line)
    a("s_cmp_eq_u32 s%d, 3", dst)
    a("s_cselect_b32 s%d, s%d, s%d", dst, t, line)
    a("s_lshl_b32 s%d, s%d, 7", dst, dst)


def frag_offsets(a, dst, t0, t1):
    a("v_lshlrev_b32 v%d, 4, v1", t0)
    a("v_and_b32 v%d, 0x70, v%d", t1, t0)
    a("v_and_b32 v%d, 56, v1", dst)
    a("v_cmp_eq_u32 vcc, 24, v%d", dst)
    for j in range(4):
        a("v_add_u32 v%d, %d, v%d", dst + j, 1024 * j, t0)
    for j in range(4):
        a("v_add_u32 v%d, %d, v%d", t0, 4096 + 128 * POS[j], t1)
        a("v_cndmask_b32 v%d, v%d, v%d, vcc", dst + j, dst + j, t0)


def signal(a, k, grp, member, keep=0):
    a("s_lshl_b32 s100, %s, 8", grp)
    a("s_lshl_b32 s101, %s, 2", member)
    a("s_add_u32 s100, s100, s101")
    a("v_mov_b32 v28, %s", TAG)
    a("s_waitcnt vmcnt(%d)", keep)
    a("s_barrier")
    a("s_cmp_lg_u32 %s, 0", WAVE)
    a("s_cbranch_scc1 L_sig%d", k)
    a("s_mov_b64 exec, 1")
    a("buffer_store_dword v28, off, %s, s100 %s", q4(RF), FM)
    a("s_mov_b64 exec, -1")
    a.label("L_sig%d" % k)


def flag_base(a, k):
    a("s_add_u32 s%d, s%d, 0x%x", RF, PWS, WS_FL + 2048 * k)
    a("s_addc_u32 s%d, s%d, 0", RF + 1, PWS + 1)


def await_(a, k, grp):
    a("s_cmp_lg_u32 %s, 0", WAVE)
    a("s_cbranch_scc1 L_got%d", k)
    if grp is None:
        a("v_lshrrev_b32 v29, 3, v1")
        a("v_lshlrev_b32 v29, 8, v29")
        a("v_and_b32 v30, 7, v1")
        a("v_lshl_add_u32 v29, v30, 4, v29")
        a("s_mov_b32 s100, 0")
    else:
        a("v_and_b32 v29, 31, v1")
        a("v_lshlrev_b32 v29, 2, v29")
        a("s_lshl_b32 s100, %s, 8", grp)
    a("s_mov_b32 s101, 0")
    a.label("L_poll%d" % k)
    if grp is None:
        a("buffer_load_dwordx4 v[244:247], v29, %s, s100 offen %s", q4(RF), FM)
        a("s_waitcnt vmcnt(0)")
        a("v_xor_b32 v244, %s, v244", TAG)
        a("v_xor_b32 v245, %s, v245", TAG)
        a("v_xor_b32 v246, %s, v246", TAG)
        a("v_xor_b32 v247, %s, v247", TAG)
        a("v_or_b32 v244, v244, v245")
        a("v_or3_b32 v244, v244, v246, v247")
        a("v_cmp_ne_u32 vcc, 0, v244")
    else:
        a("buffer_load_dword v30, v29, %s, s100 offen %s", q4(RF), FM)
        a("s_waitcnt vmcnt(0)")
        a("v_cmp_ne_u32 vcc, %s, v30", TAG)
    a("s_nop 4")
    a("s_cbranch_vccz L_got%d", k)
    if geti("slp", 0):
        a("s_sleep %d", geti("slp", 0))
    a("s_add_u32 s101, s101, 1")
    a("s_cmp_lt_u32 s101, 0x8000")
    a("s_cbranch_scc1 L_poll%d", k)
    a.label("L_got%d" % k)
    a("s_barrier")


def code_touch(a, r, vtmp, lo, tag):
    a("s_cmp_lg_u32 %s, 3", WAVE)
    a("s_cbranch_scc1 L_ct%s", tag)
    a("s_add_u32 s%d, s6, %s-L_pc", r, lo)
    a("s_addc_u32 s%d, s7, 0", r + 1)
    a("s_mov_b32 s%d, L_code_end-%s", r + 2, lo)
    a("s_mov_b32 s%d, 0x20000", r + 3)
    a("s_lshl_b32 s100, %s, 7", IDX)
    a("v_lshlrev_b32 v%d, 12, v1", vtmp)
    a("buffer_load_dword v%d, v%d, %s, s100 offen", vtmp, vtmp, q4(r))
    a.label("L_ct%s" % tag)


HP = 40


def load_h(a):
    srd(a, R3, PSK, 0, D * S * 2)
    a("s_lshl_b32 s70, %s, 5", XCD)
    a("s_add_u32 s70, s70, %s", IDX)
    a("s_lshl_b32 s71, s70, 3")
    a("s_load_dwordx2 s[72:73], %s, s71", sr(PSD, 2))
    a("s_lshl_b32 s70, s70, 2")
    a("s_add_u32 s70, s70, %s", WAVE)
    a("s_lshl_b32 s70, s70, 12")
    a("v_lshlrev_b32 v9, 4, v1")
    for i in range(4):
        a("buffer_load_dwordx4 %s, v9, %s, s70 offen offset:%d %s", vr(HP + 6 * i + 2, 4), q4(R3), 1024 * i, NT)


def load_x(a):
    srd(a, R4, PQ, 0, S * D * 2)
    a("v_and_b32 v3, 7, v0")
    a("v_lshrrev_b32 v4, 3, v0")
    a("v_lshlrev_b32 v3, 11, v3")
    a("v_lshl_add_u32 v3, v4, 4, v3")
    a("s_lshl_b32 s76, s35, 14")
    return ["buffer_load_dwordx4 %s, v3, %s, s76 offen offset:%d %s" % (ar(XA + 4 * i, 4), q4(R4), 512 * i, NT)
            for i in range(4)]


def phase_pre(a):
    a("s_lshl_b32 s64, %s, 6", IDX)
    a("s_lshl_b32 s65, %s, 4", WAVE)
    a("s_add_u32 s64, s64, s65")
    a("v_lshrrev_b32 v3, 4, v1")
    a("v_add_u32 v4, s64, v3")
    a("v_lshlrev_b32 v4, 11, v4")
    a("v_and_b32 v5, 15, v1")
    a("s_lshl_b32 s65, %s, 2", WAVE)
    a("v_xor_b32 v6, s65, v5")
    a("v_lshl_add_u32 v4, v6, 4, v4")
    a("s_lshl_b32 s66, %s, 8", XCD)
    a("v_add_u32 v4, s66, v4")
    a("v_xor_b32 v6, 32, v4")
    a("v_xor_b32 v5, 14, v5")
    a("v_lshlrev_b32 v3, 11, v3")
    a("v_lshl_add_u32 v5, v5, 4, v3")
    a("s_lshl_b32 s67, %s, 17", IDX)
    a("s_add_u32 s67, s67, s66")
    a("s_sub_u32 s67, s67, 8192")
    a("s_cmp_eq_u32 %s, 0", IDX)
    a("s_cselect_b32 s67, 0x40000000, s67")
    a("s_lshl_b32 s68, %s, 12", WAVE)
    a("s_mov_b32 s74, 8192")
    a("s_mov_b32 s75, 16384")
    a("s_mov_b32 s76, 24576")
    a("v_lshrrev_b32 v7, 3, v0")
    a("s_lshl_b32 s65, %s, 5", XCD)
    a("v_add_u32 v8, s65, v7")
    a("v_lshlrev_b32 v10, 5, v8")
    a("s_waitcnt lgkmcnt(0)")
    srd(a, R0, PK, 0, S * D * 2)
    srd(a, R1, PV, 0, S * D * 2)
    srd(a, R2, PSH, 0, D * 8)
    a("s_cmp_lg_u32 %s, 0", WAVE)
    a("s_cbranch_scc1 L_pre_nohalo")
    a("s_mov_b32 m0, %d", L_KT)
    a("buffer_load_dwordx4 v5, %s, s67 offen %s lds", q4(R0), NT)
    a.label("L_pre_nohalo")
    so = ["0", "s74", "s75", "s76"]
    for base, r in ((L_KT + 1024, R0), (L_VT, R1)):
        for n in range(4):
            a("s_add_u32 m0, s68, %d", base + 1024 * n)
            a("buffer_load_dwordx4 %s, %s, %s offen %s lds", "v6" if n >= 2 else "v4", q4(r), so[n], NT)
    WR = 32
    a("buffer_load_dwordx4 %s, v10, %s, 0 offen", vr(WR, 4), q4(R2))
    a("buffer_load_dwordx4 %s, v10, %s, 0 offen offset:16", vr(WR + 4, 4), q4(R2))
    later = 0
    if FUSED:
        srd(a, RF, PWS, WS_FL, 2048)
        a("buffer_load_dword v28, off, %s, 0 sc0 sc1", q4(RF))
        load_h(a)
        later += 5
    a("v_and_b32 v11, 7, v0")
    a("v_lshrrev_b32 v12, 1, v7")
    a("v_lshlrev_b32 v13, 1, v11")
    a("v_xor_b32 v14, v12, v13")
    a("v_add_u32 v13, 14, v13")
    a("v_and_b32 v13, 14, v13")
    a("v_xor_b32 v13, v12, v13")
    a("v_and_b32 v12, 1, v7")
    a("v_lshlrev_b32 v12, 3, v12")
    a("v_lshl_add_u32 v12, v11, 11, v12")
    a("v_add_u32 v12, %d, v12", L_KT)
    a("v_lshl_add_u32 v14, v14, 4, v12")
    a("v_lshl_add_u32 v13, v13, 4, v12")
    a("v_mul_u32_u24 v17, %d, v8", 4 * BLK)
    a("v_lshlrev_b32 v18, 4, v11")
    a("v_sub_u32 v17, v17, v18")
    a("s_sub_u32 s65, 31, %s", IDX)
    line_offset(a, 64, 65, 66)
    a("s_add_u32 s64, s64, 112")
    a("v_add_u32 v17, s64, v17")
    a("s_mov_b32 s74, %d", BLK)
    a("s_mov_b32 s75, %d", 2 * BLK)
    a("s_mov_b32 s76, %d", 3 * BLK)
    KR, VR, WTF, KF, VF, KS = 64, 86, 102, 118, 162, 194
    a("s_waitcnt vmcnt(%d)", later)
    a("s_barrier")
    stamp(a, 1)
    for j in range(3):
        a("ds_read_b64 %s, v13 offset:%d", vr(KR + 2 * j, 2), 256 * (1 + j))
    for j in range(8):
        a("ds_read_b64 %s, v14 offset:%d", vr(KR + 6 + 2 * j, 2), 256 * (4 + j))
        if j >= 5:
            continue
        a("ds_read_b64 %s, v14 offset:%d", vr(VR + 2 * j, 2), L_VT - L_KT + 256 * j) if j < 2 else None
    srd(a, R0, PWS, WS_UB, UB_SZ)
    for c in range(4):
        for j in range(4):
            src = WR + 2 * c + (j >> 1)
            if j & 1:
                a("v_and_b32 v%d, 0xffff0000, v%d", WTF + 4 * j + c, src)
            else:
                a("v_lshlrev_b32 v%d, 16, v%d", WTF + 4 * j + c, src)
    a("s_waitcnt lgkmcnt(0)")
    for j in range(2, 8):
        a("ds_read_b64 %s, v14 offset:%d", vr(VR + 2 * j, 2), L_VT - L_KT + 256 * j)
    for j in range(11):
        unpack(a, KF + 4 * j, KR + 2 * j)
        unpack(a, KF + 4 * j + 2, KR + 2 * j + 1)
    a("s_waitcnt lgkmcnt(0)")
    for jp in range(4):
        js = (2 * jp, 2 * jp + 1)
        for j in js:
            unpack(a, VF + 4 * j, VR + 2 * j)
            unpack(a, VF + 4 * j + 2, VR + 2 * j + 1)
        ks = lambda j, p: vr(KS + 4 * (j & 1) + 2 * p, 2)
        for j in js:
            for p in range(2):
                a("v_pk_mul_f32 %s, %s, %s", ks(j, p), vr(KF + 4 * j + 2 * p, 2), vr(WTF + 12 + 2 * p, 2))
        for tap in (2, 1, 0):
            for j in js:
                for p in range(2):
                    a("v_pk_fma_f32 %s, %s, %s, %s", ks(j, p), vr(KF + 4 * (j + 3 - tap) + 2 * p, 2),
                      vr(WTF + 4 * tap + 2 * p, 2), ks(j, p))
        for j in js:
            for p in range(2):
                a("v_pk_mul_f32 %s, %s, %s", vr(VF + 4 * j + 2 * p, 2), ks(j, p), vr(VF + 4 * j + 2 * p, 2))
    W = 64
    for c in range(4):
        for n in range(4):
            a("v_cvt_pk_bf16_f32 v%d, v%d, v%d", W + 4 * c + n, VF + 4 * (7 - 2 * n) + c, VF + 4 * (6 - 2 * n) + c)
        a("buffer_store_dwordx4 %s, v17, %s, %s offen %s", vr(W + 4 * c, 4), q4(R0), so[c], "sc1" if FUSED else P.get("umod", ""))
    a("s_waitcnt vmcnt(4)")
    stamp(a, 2)


def wc_load(a):
    srd(a, R5, PWD, 0, F * D * 2)
    a("v_lshrrev_b32 v11, 4, v0")
    a("s_mul_i32 s64, s2, 14")
    a("v_add_u32 v12, s64, v11")
    a("v_bfe_u32 v13, v0, 3, 1")
    a("v_and_b32 v14, 7, v0")
    a("v_lshlrev_b32 v15, 11, v12")
    a("v_lshl_add_u32 v15, v13, 10, v15")
    a("v_lshl_add_u32 v15, v14, 4, v15")
    a("v_add_u32 v15, 384, v15")
    a("v_lshlrev_b32 v19, 9, v12")
    a("v_lshl_add_u32 v19, v13, 8, v19")
    a("v_lshl_add_u32 v19, v14, 4, v19")
    a("v_mov_b32 v14, 0x7fff0000")
    a("v_cmp_le_u32 vcc, 14, v11")
    a("v_cndmask_b32 v15, v15, v14, vcc")
    a("v_cndmask_b32 v19, v19, v14, vcc")
    return "buffer_load_dwordx4 v[20:23], v15, %s, 0 offen %s" % (q4(R5), NT)


def build_h(a):
    a("s_mul_i32 s71, %s, %d", WAVE, CH)
    a("v_lshlrev_b32 v9, 4, v1")
    a("v_add_u32 v9, s71, v9")
    a("v_mov_b32 v2, 0")
    a("v_mov_b32 v3, 0")
    a("v_bfe_u32 v4, v1, 3, 2")
    a("v_mul_u32_u24 v4, %d, v4", HS)
    a("v_and_b32 v5, 7, v1")
    a("v_min_u32 v5, 5, v5")
    a("v_lshl_add_u32 v4, v5, 3, v4")
    a("v_add_u32 v4, s71, v4")
    a("ds_write_b64 v4, v[2:3]")
    a("v_min_u32 v5, 56, v1")
    a("v_lshlrev_b32 v5, 3, v5")
    a("v_add_u32 v5, s71, v5")
    a("ds_write_b64 v5, v[2:3] offset:%d", UOFF + 4088)
    a("ds_write_b64 v5, v[2:3] offset:%d", UOFF + US + 4096)
    for i in range(4):
        M0, M1, P0, P1, P2, P3 = [HP + 6 * i + x for x in range(6)]
        a("v_mov_b32_dpp v%d, v%d wave_shr:1 row_mask:0xf bank_mask:0xf bound_ctrl:0", M0, P2)
        a("v_mov_b32_dpp v%d, v%d wave_shr:1 row_mask:0xf bank_mask:0xf bound_ctrl:0", M1, P3)
        if i:
            a("v_readlane_b32 s64, v%d, 63", P2 - 6)
            a("v_readlane_b32 s65, v%d, 63", P3 - 6)
            a("v_writelane_b32 v%d, s64, 0", M0)
            a("v_writelane_b32 v%d, s65, 0", M1)
    for i in range(4):
        M0, M1, P0, P1, P2, P3 = [HP + 6 * i + x for x in range(6)]
        T = 200 + 12 * i
        base = 48 + 1024 * i
        a("ds_write_b128 v9, %s offset:%d", vr(P0, 4), base + 3 * HS)
        for n, (hi, lo) in enumerate([(M1, M0), (P0, M1), (P1, P0), (P2, P1)]):
            a("v_alignbit_b32 v%d, v%d, v%d, 16", T + n, hi, lo)
        a("ds_write_b128 v9, %s offset:%d", vr(T, 4), base + 0 * HS)
        for n, src in enumerate([M1, P0, P1, P2]):
            a("v_mov_b32 v%d, v%d", T + 4 + n, src)
        a("ds_write_b128 v9, %s offset:%d", vr(T + 4, 4), base + 1 * HS)
        for n, (hi, lo) in enumerate([(P0, M1), (P1, P0), (P2, P1), (P3, P2)]):
            a("v_alignbit_b32 v%d, v%d, v%d, 16", T + 8 + n, hi, lo)
        a("ds_write_b128 v9, %s offset:%d", vr(T + 8, 4), base + 2 * HS)


def u_setup(a):
    srd(a, R0, PWS, WS_UB, UB_SZ)
    frag_offsets(a, 24, 80, 81)
    a("s_lshr_b32 s77, s70, 12")
    a("s_mul_i32 s77, s77, %d", BLK)


def load_u(a):
    for i in range(4):
        a("buffer_load_dwordx4 %s, v%d, %s, s77 offen %s", vr(64 + 4 * i, 4), 24 + i, q4(R0), SC)


def conv_setup(a):
    a("v_and_b32 v10, 3, v1")
    a("v_mul_u32_u24 v10, %d, v10", HS)
    a("v_bfe_u32 v11, v1, 2, 2")
    a("v_lshrrev_b32 v12, 4, v1")
    a("v_add_u32 v11, v11, v12")
    a("v_lshl_add_u32 v10, v11, 4, v10")
    a("v_add_u32 v5, s71, v10")
    a("v_and_b32 v10, 1, v1")
    a("v_bfe_u32 v11, v1, 1, 3")
    a("v_mul_u32_u24 v13, %d, v10", US)
    a("v_lshlrev_b32 v14, 2, v11")
    a("v_sub_u32 v15, v12, v14")
    a("v_add_u32 v15, 28, v15")
    a("v_lshl_add_u32 v13, v15, 4, v13")
    a("v_add_u32 v6, s71, v13")
    a("v_add_u32 v14, v14, v12")
    a("v_lshlrev_b32 v15, 4, v14")
    a("v_lshl_add_u32 v15, v10, 3, v15")
    a("v_add_u32 v7, s71, v15")
    a("v_sub_u32 v15, %d, v15", 31 * 16 + 8)
    a("v_add_u32 v8, s71, v15")
    srd(a, R1, PWS, WS_YB, YB_SZ)
    a("s_and_b32 s64, %s, 1", WAVE)
    a("s_cmp_eq_u32 s64, 0")
    a("s_cselect_b32 s%d, s%d, s%d", R2, PWG, PWU)
    a("s_cselect_b32 s%d, s%d, s%d", R2 + 1, PWG + 1, PWU + 1)
    a("s_mov_b32 s%d, 0x%x", R2 + 2, D * F * 2)
    a("s_mov_b32 s%d, 0x20000", R2 + 3)
    a("v_lshrrev_b32 v16, 3, v1")
    a("v_mul_u32_u24 v16, 7168, v16")
    a("v_and_b32 v17, 7, v1")
    a("v_min_u32 v17, 6, v17")
    a("v_lshl_add_u32 v16, v17, 7, v16")
    a("s_lshl_b32 s64, %s, 1", IDX)
    a("s_lshr_b32 s65, %s, 1", WAVE)
    a("s_add_u32 s64, s64, s65")
    a("s_mul_i32 s66, s64, %d", 8 * 7168)
    a("s_mul_i32 s65, %s, 896", XCD)
    a("s_add_u32 s66, s66, s65")
    a("s_waitcnt lgkmcnt(0)")
    a("s_cmp_ge_u32 %s, 2", WAVE)
    a("s_cselect_b32 s68, s73, s72")
    a("s_and_b32 s69, %s, 1", WAVE)
    a("s_xor_b32 s69, s69, 1")
    a("s_lshl_b32 s69, s69, 4")
    a("s_lshl_b32 s68, s68, s69")
    a("s_and_b32 s68, s68, 0xffff0000")
    a("s_mov_b32 s69, s68")
    bg = {}
    t0, xs = geti("pfat", 3), geti("xat", 131)
    bg[xs + 32] = wc_load(a)
    if FUSED:
        for i, l in enumerate(load_x(a)):
            bg[xs + 8 * i] = l
    if geti("pf", 1):
        bg[t0] = "buffer_load_dword v18, v16, %s, s66 offen" % q4(R2)
    return bg


def phase_conv(a, touches):
    early = 1 if -1 in touches else 0
    if early:
        a(touches[-1])
    for i in range(4):
        a("s_waitcnt vmcnt(%d)", 3 - i + early)
        a("ds_write_b128 v9, %s offset:%d", vr(64 + 4 * i, 4), UOFF + US + 1024 * i)
        a("ds_write_b64 v9, %s offset:%d", vr(64 + 4 * i, 2), UOFF - 8 + 1024 * i)
        a("ds_write_b64 v9, %s offset:%d", vr(66 + 4 * i, 2), UOFF + 1024 * i)
    a("s_waitcnt lgkmcnt(0)")
    stamp(a, 5)
    AB = [32, 64]
    BB = [96, 128]
    ACC, UE, UF = 160, 192, 208

    def reads(kp):
        buf = kp & 1
        A = lambda t: "ds_read_b128 %s, v5 offset:%d" % (vr(AB[buf] + 4 * t, 4), 512 * t + 64 * kp)
        B = lambda c: "ds_read_b128 %s, v6 offset:%d" % (vr(BB[buf] + 4 * c, 4), UOFF + 3584 - 512 * c + 64 * kp)
        return [A(0)] + [B(c) for c in range(8)] + [A(t) for t in range(1, 8)]

    for r in reads(0):
        a(r)
    for kp in range(8):
        buf = kp & 1
        fill = reads(kp + 1) if kp < 7 else []
        extra = []
        if kp == 7:
            fill = ["ds_read_b64 %s, v8 offset:%d" % (vr(UE + 2 * c, 2), UOFF + US + 3584 - 512 * c) for c in range(8)]
            for c in range(8):
                extra.append("v_and_b32 v%d, 0xffff0000, v%d" % (UF + 4 * c + 0, UE + 2 * c + 1))
                extra.append("v_lshlrev_b32 v%d, 16, v%d" % (UF + 4 * c + 1, UE + 2 * c + 1))
                extra.append("v_and_b32 v%d, 0xffff0000, v%d" % (UF + 4 * c + 2, UE + 2 * c))
                extra.append("v_lshlrev_b32 v%d, 16, v%d" % (UF + 4 * c + 3, UE + 2 * c))
        a("s_waitcnt lgkmcnt(%d)", 7 if kp == 0 else 0)
        n = 0
        waited = False
        for t in range(8):
            if kp == 0 and t == 1:
                a("s_waitcnt lgkmcnt(4)")
            cs = range(8 - t) if t % 2 == 0 else range(7 - t, -1, -1)
            for c in cs:
                acc = vr(ACC + 4 * (t + c), 4)
                src = "0" if (kp == 0 and t == 0) else acc
                a("v_mfma_f32_16x16x32_bf16 %s, %s, %s, %s", acc, vr(AB[buf] + 4 * t, 4), vr(BB[buf] + 4 * c, 4), src)
                n += 1
                if fill and (n % 2 == 0 or kp == 7):
                    a(fill.pop(0))
                elif extra and not fill and n >= 18:
                    if not waited:
                        a("s_waitcnt lgkmcnt(0)")
                        waited = True
                    a(extra.pop(0))
                    if extra:
                        a(extra.pop(0))
                gi = 36 * kp + n
                if gi in touches:
                    a(touches[gi])
        assert not fill
        for e in extra:
            a(e)
    stamp(a, 6)
    for c in range(8):
        for p in range(2):
            r = ACC + 4 * c + 2 * p
            a("v_pk_fma_f32 %s, %s, s[68:69], %s", vr(r, 2), vr(UF + 4 * c + 2 * p, 2), vr(r, 2))
        a("v_cvt_pk_bf16_f32 v%d, v%d, v%d", 32 + 2 * c, ACC + 4 * c, ACC + 4 * c + 1)
        a("v_cvt_pk_bf16_f32 v%d, v%d, v%d", 33 + 2 * c, ACC + 4 * c + 2, ACC + 4 * c + 3)
        a("ds_write_b64 v7, %s offset:%d", vr(32 + 2 * c, 2), 512 * c)
    a("s_lshl_b32 s64, %s, 10", WAVE)
    a("v_lshlrev_b32 v2, 2, v1")
    a("v_add_u32 v2, s64, v2")
    a("v_add_u32 v3, %d, v2", 2 * CH)
    a("v_lshrrev_b32 v4, 2, v1")
    a("v_mul_u32_u24 v4, %d, v4", 4 * BLK)
    a("v_and_b32 v9, 3, v1")
    a("v_lshl_add_u32 v4, v9, 4, v4")
    a("s_bfe_u32 s65, s70, 0x5000f")
    line_offset(a, 64, 65, 66)
    a("s_lshr_b32 s65, s70, 20")
    a("s_mul_i32 s65, s65, %d", BLK)
    a("s_add_u32 s64, s64, s65")
    a("s_bfe_u32 s65, s70, 0x1000e")
    a("s_lshl_b32 s65, s65, 6")
    a("s_add_u32 s64, s64, s65")
    a("s_mul_i32 s65, %s, %d", WAVE, 64 * 4 * BLK)
    a("s_add_u32 s64, s64, s65")
    for n in range(1, 4):
        a("s_add_u32 s%d, s64, %d", 64 + n, 16 * 4 * BLK * n)
    a("s_mov_b32 s74, 0x05040100")
    a("s_mov_b32 s75, 0x07060302")
    a("s_waitcnt lgkmcnt(0)")
    a("s_barrier")
    Y, O = 64, 96
    for n in range(4):
        for c in range(4):
            a("ds_read_b32 v%d, %s offset:%d", Y + 4 * n + c, "v2" if c < 2 else "v3", (c & 1) * CH + 256 * n)
    for n in range(4):
        a("s_waitcnt lgkmcnt(%d)", 4 * (3 - n))
        y = Y + 4 * n
        a("v_perm_b32 v%d, v%d, v%d, s74", O + 4 * n + 0, y + 1, y + 0)
        a("v_perm_b32 v%d, v%d, v%d, s74", O + 4 * n + 1, y + 3, y + 2)
        a("v_perm_b32 v%d, v%d, v%d, s75", O + 4 * n + 2, y + 1, y + 0)
        a("v_perm_b32 v%d, v%d, v%d, s75", O + 4 * n + 3, y + 3, y + 2)
        a("buffer_store_dwordx4 %s, v4, %s, s%d offen %s", vr(O + 4 * n, 4), q4(R1), 64 + n,
          "sc1" if FUSED else P.get("ymod", ""))
    srd(a, R5, PWS, WS_WC, WC_SZ)
    a("s_waitcnt vmcnt(4)")
    a("buffer_store_dwordx4 v[20:23], v19, %s, 0 offen sc1", q4(R5))
    stamp(a, 7)


def ln_stats(a, X, T, lds_off, out, between=None):
    a("v_and_b32 v14, 7, v0")
    a("v_lshlrev_b32 v14, 5, v14")
    a("v_add_u32 v14, %d, v14", L_ST + lds_off)
    a("s_lshl_b32 s64, %s, 3", WAVE)
    a("v_add_u32 v15, s64, v14")
    for c in range(4):
        a("v_pk_add_f32 %s, %s, %s", vr(T + 2 * c, 2), vr(X + 2 * c, 2), vr(X + 8 + 2 * c, 2))
        a("v_pk_mul_f32 %s, %s, %s", vr(T + 8 + 2 * c, 2), vr(X + 2 * c, 2), vr(X + 2 * c, 2))
    for g in (8, 16, 24):
        for c in range(4):
            x = vr(X + g + 2 * c, 2)
            if g > 8:
                a("v_pk_add_f32 %s, %s, %s", vr(T + 2 * c, 2), vr(T + 2 * c, 2), x)
            a("v_pk_fma_f32 %s, %s, %s, %s", vr(T + 8 + 2 * c, 2), x, x, vr(T + 8 + 2 * c, 2))
    for b in (T, T + 8):
        a("v_pk_add_f32 %s, %s, %s", vr(b, 2), vr(b, 2), vr(b + 2, 2))
        a("v_pk_add_f32 %s, %s, %s", vr(b + 4, 2), vr(b + 4, 2), vr(b + 6, 2))
    for b in (T, T + 8):
        a("v_pk_add_f32 %s, %s, %s", vr(b, 2), vr(b, 2), vr(b + 4, 2))
    a("v_add_f32 v10, v%d, v%d", T, T + 1)
    a("v_add_f32 v11, v%d, v%d", T + 8, T + 9)
    for r in (10, 11):
        a("v_add_f32_dpp v%d, v%d, v%d row_ror:8 row_mask:0xf bank_mask:0xf", r, r, r)
    for op in ("v_permlane16_swap_b32", "v_permlane32_swap_b32"):
        a("v_mov_b32 v12, v10")
        a("v_mov_b32 v13, v11")
        a("%s v10, v12", op)
        a("%s v11, v13", op)
        a("v_pk_add_f32 v[10:11], v[10:11], v[12:13]")
    a("ds_write_b64 v15, v[10:11]")
    a("s_waitcnt lgkmcnt(0)")
    a("s_barrier")
    a("ds_read_b128 %s, v14", vr(T, 4))
    a("ds_read_b128 %s, v14 offset:16", vr(T + 4, 4))
    if between:
        between()
    a("s_waitcnt lgkmcnt(0)")
    a("v_pk_add_f32 %s, %s, %s", vr(T, 2), vr(T, 2), vr(T + 2, 2))
    a("v_pk_add_f32 %s, %s, %s", vr(T + 4, 2), vr(T + 4, 2), vr(T + 6, 2))
    a("v_pk_add_f32 v[10:11], %s, %s", vr(T, 2), vr(T + 4, 2))
    a("v_mul_f32 v10, 0x3a800000, v10")
    a("v_mul_f32 v11, 0x3a800000, v11")
    a("v_fma_f32 v11, -v10, v10, v11")
    a("v_max_f32 v11, 0, v11")
    a("v_cvt_pk_bf16_f32 v10, v10, v11")
    a("v_and_b32 v11, 0xffff0000, v10")
    a("v_lshlrev_b32 v10, 16, v10")
    a("v_add_f32 v11, 0x3727c5ac, v11")
    a("v_cvt_pk_bf16_f32 v11, v11, v11")
    a("v_lshlrev_b32 v11, 16, v11")
    a("v_sqrt_f32 v11, v11")
    a("v_cvt_pk_bf16_f32 v11, v11, v11")
    a("v_lshlrev_b32 v11, 16, v11")
    a("v_rcp_f32 v%d, v11", out)
    a("v_rcp_f32 v%d, v11", out + 1)
    a("v_mul_f32_e64 v%d, -v10, v%d", out + 2, out)
    a("v_mul_f32_e64 v%d, -v10, v%d", out + 3, out)


XR, YR, XF, YF, LT = 32, 48, 64, 96, 128


def x_unpack(a):
    for i in range(16):
        a("v_accvgpr_read_b32 v%d, a%d", XR + i, XA + i)
    for i in range(16):
        unpack(a, XF + 2 * i, XR + i)


def x_stats(a):
    x_unpack(a)
    ln_stats(a, XF, LT, 0, 20)


def y_setup(a):
    srd(a, R0, PWS, WS_YB, YB_SZ)
    a("v_and_b32 v2, 7, v0")
    a("v_lshrrev_b32 v3, 3, v0")
    a("s_cmp_eq_u32 %s, 3", WAVE)
    a("s_cselect_b32 s64, 4, %s", WAVE)
    a("s_add_u32 s64, s64, 32")
    a("v_mov_b32 v7, s64")
    a("v_and_b32 v4, 7, v3")
    a("v_cmp_eq_u32 vcc, 3, v4")
    a("v_cndmask_b32 v4, v3, v7, vcc")
    a("v_lshlrev_b32 v4, 7, v4")
    a("v_lshl_add_u32 v4, v2, 3, v4")
    a("s_mul_i32 s64, s35, %d", 4 * BLK)
    for i in range(1, 4):
        a("s_add_u32 s%d, s64, %d", 64 + i, BLK * i)


def load_y(a):
    for i in range(4):
        for hf in range(2):
            a("buffer_load_dwordx2 %s, v4, %s, s%d offen offset:%d %s", vr(YR + 4 * i + 2 * hf, 2), q4(R0), 64 + i,
              64 * hf, SC)


def ln_prepare(a):
    srd(a, R1, PWS, WS_H, S * D * 2)
    srd(a, R2, PWS, WS_XT, XT_SZ)
    a("v_and_b32 v2, 7, v0")
    a("v_lshrrev_b32 v3, 3, v0")
    a("v_lshlrev_b32 v6, 11, v2")
    a("v_lshl_add_u32 v6, v3, 4, v6")
    a("s_lshl_b32 s78, s35, 14")
    a("s_lshr_b32 s74, s35, 3")
    a("s_mul_i32 s74, s74, %d", 32 * BLK)
    for i in range(1, 4):
        a("s_add_u32 s%d, s74, %d", 74 + i, 8 * BLK * i)
    a("s_bfe_u32 s68, s35, 0x20001")
    a("s_and_b32 s69, s35, 1")
    a("s_lshl_b32 s70, s68, 10")
    a("s_lshl_b32 s71, s69, 7")
    a("s_add_u32 s70, s70, s71")
    a("s_cmp_eq_u32 s68, 3")
    a("s_cselect_b32 s71, 4, s68")
    a("s_lshl_b32 s71, s71, 7")
    a("s_add_u32 s71, s71, 4096")
    a("s_add_u32 s72, s70, 256")
    a("s_cmp_eq_u32 s69, 1")
    a("s_cselect_b32 s71, s71, s72")
    a("v_and_b32 v7, 3, v3")
    a("v_lshlrev_b32 v5, 8, v7")
    a("v_add_u32 v5, s70, v5")
    a("v_mov_b32 v8, s71")
    a("v_cmp_eq_u32 vcc, 1, v7")
    a("v_cndmask_b32 v5, v5, v8, vcc")
    a("v_lshl_add_u32 v5, v2, 4, v5")
    a("v_lshrrev_b32 v7, 2, v3")
    a("v_mul_u32_u24 v7, %d, v7", BLK)
    a("v_add_u32 v5, v5, v7")
    for i in range(16):
        a("v_pk_fma_f32 %s, %s, v[20:21], v[22:23]", vr(LT + 16 + 2 * i, 2), vr(XF + 2 * i, 2))


def phase_ln(a):
    xm = "sc1" if FUSED else P.get("xmod", "sc1")
    for i in range(4):
        a("s_waitcnt vmcnt(%d)", 2 * (3 - i))
        for k in range(4 * i, 4 * i + 4):
            unpack(a, YF + 2 * k, YR + k)
        for k in range(4 * i, 4 * i + 4):
            a("v_pk_fma_f32 %s, %s, %s, %s", vr(YF + 2 * k, 2), vr(LT + 16 + 2 * k, 2), vr(YF + 2 * k, 2), vr(XF + 2 * k, 2))
        for k in range(4 * i, 4 * i + 4):
            a("v_cvt_pk_bf16_f32 v%d, v%d, v%d", XR + k, YF + 2 * k, YF + 2 * k + 1)
        for k in range(4 * i, 4 * i + 4):
            unpack(a, XF + 2 * k, XR + k)
    stamp(a, 10)

    def h_store():
        for i in range(4):
            a("buffer_store_dwordx4 %s, v6, %s, s78 offen offset:%d %s", vr(XR + 4 * i, 4), q4(R1), 512 * i, xm)

    ln_stats(a, XF, LT, 256, 16)
    for i in range(4):
        for k in range(4 * i, 4 * i + 4):
            a("v_pk_fma_f32 %s, %s, v[16:17], v[18:19]", vr(XF + 2 * k, 2), vr(XF + 2 * k, 2))
        for k in range(4 * i, 4 * i + 4):
            a("v_cvt_pk_bf16_f32 v%d, v%d, v%d", YR + k, XF + 2 * k, XF + 2 * k + 1)
        a("buffer_store_dwordx4 %s, v5, %s, s%d offen %s", vr(YR + 4 * i, 4), q4(R2), 74 + i, xm)
    h_store()
    stamp(a, 11)


def place_loads(gaps, items, slots):
    place = {}
    for i, it in enumerate(items):
        sl = slots[(i * len(slots)) // len(items)]
        assert sl not in place
        place[sl] = it
    prev = -1
    for sl in sorted(place):
        for k, pi in enumerate(reversed(place[sl][0])):
            g = min(max(prev + 1, sl - 1 - k, 0), sl)
            gaps[g].insert(0, pi)
        prev = sl
    return place


def run_loop(a, vm, stage, waits, lo, hi, label, post_body):
    a("s_mov_b32 s66, %d", lo)
    a.label(label)
    w0 = len(waits)
    sv = list(vm.q)
    for tau in range(lo, hi):
        stage(Null(), tau, [("W", tau + 4), ("X", tau + 3)], True)
    steady = waits[w0:]
    body = [min(steady[u::4]) for u in range(4)]
    end_q = list(vm.q)
    vm.q = sv
    real_need = vm.need
    for tau in range(lo, lo + 4):
        vm.need = lambda tags, v=body[(tau - lo) & 3]: v
        stage(a, tau, [("W", tau + 4), ("X", tau + 3)], True)
    vm.need = real_need
    vm.q = end_q
    post_body()
    a("s_add_u32 s66, s66, 4")
    a("s_cmp_lt_u32 s66, %d", hi)
    a("s_cbranch_scc1 %s", label)


class G1:
    NST = 32
    WF, XF, ACC = 0, 32, 32

    def __init__(self, a):
        self.a = a
        self.vm = VM()
        self.waits = []

    def setup_w(self):
        a = self.a
        a("s_lshr_b32 s88, %s, 3", IDX)
        a("s_lshl_b32 s86, %s, 2", XCD)
        a("s_add_u32 s88, s88, s86")
        a("v_mul_u32_u24 v26, 4682, v1")
        a("v_lshrrev_b32 v26, 16, v26")
        a("v_mul_u32_u24 v27, 14, v26")
        a("v_sub_u32 v27, v1, v27")
        a("s_lshl_b32 s86, %s, 3", WAVE)
        a("v_add_u32 v26, s86, v26")
        a("v_mul_u32_u24 v26, 7168, v26")
        a("v_lshl_add_u32 v26, v27, 4, v26")
        a("s_mul_i32 s86, s88, 224")
        a("v_add_u32 v26, s86, v26")
        a("v_mov_b32 v27, 0x7fff0000")
        a("v_cmp_le_u32 vcc, 56, v1")
        a("v_cndmask_b32 v26, v26, v27, vcc")
        a("v_add_u32 v27, %d, v26", 4 * 7168)
        a("s_mul_i32 s86, %s, %d", WAVE, 2 * G1_GP)
        a("s_mov_b32 s87, 0")
        srd(a, R4, PWG, 0, D * F * 2)
        srd(a, R5, PWU, 0, D * F * 2)

    def setup2(self):
        a = self.a
        a("s_and_b32 s72, %s, 7", IDX)
        a("s_mov_b32 s71, s88")
        frag_offsets(a, 8, 12, 13)
        a("s_lshl_b32 s73, s72, 2")
        a("s_add_u32 s73, s73, %s", WAVE)
        a("s_mul_i32 s69, s73, %d", 32 * BLK)
        srd(a, R2, PWS, WS_XT, XT_SZ)
        a("v_lshrrev_b32 v5, 4, v1")
        a("v_mul_u32_u24 v5, %d, v5", 2 * G1_GP)
        a("v_bfe_u32 v6, v1, 2, 2")
        a("v_mul_u32_u24 v6, 224, v6")
        a("v_add_u32 v5, v5, v6")
        a("v_and_b32 v6, 3, v1")
        a("v_lshl_add_u32 v5, v6, 3, v5")
        a("s_and_b32 s78, s71, 1")
        a("s_xor_b32 s79, s78, 1")
        a("s_mul_i32 s79, s79, 192")
        a("v_add_u32 v6, s79, v5")
        a("s_lshl_b32 s79, s78, 5")
        a("v_add_u32 v5, s79, v5")
        a("s_mov_b32 s70, %d", 4 * G1_STAGE)
        a("s_mul_i32 s77, s73, %d", HH_BLK)
        a("s_mul_i32 s74, s71, %d", 3 * BLK)
        a("s_add_u32 s74, s74, s77")
        a("s_add_u32 s75, s74, %d", BLK)
        a("s_add_u32 s76, s74, %d", 2 * BLK)
        a("s_lshl_b32 s79, s71, 12")
        a("s_add_u32 s77, s77, s79")
        a("s_add_u32 s77, s77, %d", HH_SPLIT + 512)
        a("v_lshlrev_b32 v7, 3, v1")
        a("s_mov_b32 s65, s86")
        a("s_lshl_b32 s67, s86, 1")
        a("s_add_u32 s67, s67, %d", 4 * G1_STAGE)
        a("s_and_b32 s78, %s, 1", WAVE)
        a("s_cmp_eq_u32 s78, 0")
        a("s_cselect_b32 s%d, s%d, s%d", R1, PWG, PWU)
        a("s_cselect_b32 s%d, s%d, s%d", R1 + 1, PWG + 1, PWU + 1)
        a("s_mov_b32 s%d, 0x%x", R1 + 2, D * F * 2)
        a("s_mov_b32 s%d, 0x20000", R1 + 3)
        a("v_lshrrev_b32 v3, 3, v1")
        a("v_mul_u32_u24 v3, 7168, v3")
        a("v_and_b32 v4, 7, v1")
        a("v_min_u32 v4, 6, v4")
        a("v_lshl_add_u32 v3, v4, 7, v3")
        a("s_lshl_b32 s78, %s, 1", IDX)
        a("s_lshr_b32 s79, %s, 1", WAVE)
        a("s_add_u32 s78, s78, s79")
        a("s_add_u32 s78, s78, 64")
        a("s_mul_i32 s78, s78, %d", 8 * 7168)
        a("s_mul_i32 s79, %s, 896", XCD)
        a("s_add_u32 s78, s78, s79")
        a("s_lshl_b32 s80, %s, 2", IDX)
        a("s_add_u32 s80, s80, %s", WAVE)
        a("s_mul_i32 s80, s80, %d", 8 * 7168)
        a("s_add_u32 s80, s80, s79")
        a("s_lshr_b32 s79, %s, 3", IDX)
        a("s_lshl_b32 s79, s79, 2")
        a("s_mov_b32 s66, 0")
        a("s_mov_b32 s82, 12")

    def w_items(self, n, inloop):
        it = []
        for k in range(4):
            off = (n & 3) * G1_STAGE + (k >> 1) * G1_UP + (k & 1) * G1_GP
            pre = []
            if k == 0 and n > 0:
                pre.append("s_add_u32 s87, s87, %d" % (32 * 7168))
            if inloop:
                pre.append("s_add_u32 m0, s65, %d" % off)
            else:
                pre.append("s_add_u32 m0, s86, %d" % (off + ((n >> 2) & 1) * 4 * G1_STAGE))
            ld = "buffer_load_dwordx4 %s, %s, s87 offen lds" % ("v27" if k & 1 else "v26", q4(R5) if k >> 1 else q4(R4))
            it.append((pre, ld, ("W", n)))
        return it

    def x_items(self, n, inloop):
        it = []
        for j in range(4):
            pre = ["s_add_u32 s69, s69, %d" % BLK] if (j == 0 and n > 0) else []
            ld = "buffer_load_dwordx4 %s, v%d, %s, s69 offen %s" % (
                ar(self.XF + 16 * (n & 3) + 4 * j, 4), 8 + j, q4(R2), SC)
            it.append((pre, ld, ("X", n)))
        return it

    def issue(self, lst):
        for k, n in lst:
            for it in (self.w_items(n, False) if k == "W" else self.x_items(n, False)):
                for p in it[0]:
                    self.a(p)
                self.a(it[1])
                self.vm.issue(it[2])

    def fb(self, tau, n):
        return self.WF + 4 * ((14 * (tau & 3) + n) % 8)

    def rd(self, tau, n, hh):
        p, up = n >> 1, n & 1
        off = (tau & 3) * G1_STAGE + up * G1_UP + hh * G1_GP + (0 if p == 6 else 32 * p)
        return "ds_read_b64_tr_b16 %s, %s offset:%d" % (ar(self.fb(tau, n) + 2 * hh, 2), "v6" if p == 6 else "v5", off)

    def stage(self, e, tau, lst, inloop, extra=()):
        last = tau == self.NST - 1
        gaps = [[] for _ in range(56)]
        for n in range(14):
            if n < 7:
                t2, n2 = tau, n + 7
            elif not last:
                t2, n2 = tau + 1, n - 7
            else:
                continue
            gaps[4 * n].append(self.rd(t2, n2, 0))
            gaps[4 * n + 1].append(self.rd(t2, n2, 1))
        if (tau & 3) == 3 and not last:
            gaps[4 * 6 + 2] += ["v_add_u32 v5, s70, v5", "v_add_u32 v6, s70, v6"]
            gaps[4 * 7 + 2] += ["s_sub_u32 s70, 0, s70"]
        for n in range(1, 13, 2):
            hi = min(n + 7, 13) if last else n + 7
            gaps[4 * n + 3].append("s_waitcnt lgkmcnt(%d)" % (2 * (hi - (n + 2))))
        g = [self.w_items(n, inloop) if k == "W" else self.x_items(n, inloop) for k, n in lst]
        items = [x for pair in zip(*g) for x in pair] if len(g) == 2 else [x for y in g for x in y]
        if geti("tch", 1) and (tau & 3) == geti("tchu", 1) and tau < 28:
            items.append((["s_cmp_eq_u32 s66, s79\ns_cselect_b32 s81, s78, 0x40000000"],
                          "buffer_load_dword v4, v3, %s, s81 offen" % q4(R1), ("T", tau)))
        items += list(extra)
        slots = sorted([4 * n + 2 for n in range(14)] + [4 * n + 3 for n in range(0, 14, 2)])
        if len(items) <= 12:
            slots = [4 * n + 2 for n in range(1, 14)]
        place = place_loads(gaps, items, slots) if items else {}
        n_ = self.vm.need([("X", tau)] + ([("W", tau + 1)] if not last else []))
        self.waits.append(n_)
        e("s_waitcnt vmcnt(%d) lgkmcnt(10)" % n_)
        if not last:
            e("s_barrier")
        for i in range(56):
            n, c = i >> 2, i & 3
            j = c if n % 2 == 0 else 3 - c
            acc = vr(self.ACC + 4 * (4 * n + j), 4)
            e("v_mfma_f32_16x16x32_bf16 %s, %s, %s, %s" % (
                acc, ar(self.fb(tau, n), 4), ar(self.XF + 16 * (tau & 3) + 4 * j, 4), "0" if tau == 0 else acc))
            for f in gaps[i]:
                e(f)
            if i in place:
                e(place[i][1])
                self.vm.issue(place[i][2])

    def first_reads(self, sync=True):
        a = self.a
        if sync:
            a("s_waitcnt vmcnt(%d)" % self.vm.need([("W", 0)]))
            a("s_barrier")
        for n in range(7):
            a(self.rd(0, n, 0))
            a(self.rd(0, n, 1))

    def main(self, first, g2=None):
        a = self.a
        stamp(a, 14)
        for tau in range(4):
            self.stage(a, tau, first[tau], False)

        def post():
            a("s_sub_u32 s65, s67, s65")
            post_touch()

        def post_touch():
            a("s_cmp_eq_u32 s66, s79")
            a("s_cselect_b32 s%d, s%d, s%d", R1, PWD, R1)
            a("s_cselect_b32 s%d, s%d, s%d", R1 + 1, PWD + 1, R1 + 1)
            a("s_cselect_b32 s78, s80, s78")
            a("s_cselect_b32 s81, s82, 0")
            a("s_cselect_b32 s82, 64, s82")
            a("s_add_u32 s79, s79, s81")

        post_touch()
        run_loop(a, self.vm, self.stage, self.waits, 4, 24, "L_g1_loop", post)
        if FUSED and geti("ct", 1):
            code_touch(a, R3, 30, "L_g1_tail", "b")
        srd(a, R3, PWS, WS_HH, HH_SZ)
        it = [x for n in (10, 11, 12, 13, 0, 1, 2, 3, 9, 14, 15, 16, 17) for x in g2.w_items(n)] if g2 else []
        for tau in range(24, 28):
            self.stage(a, tau, [("W", tau + 4), ("X", tau + 3)], False, it[4 * (tau - 24):4 * (tau - 23)])
        a.label("L_g1_tail")
        self.stage(a, 28, [("X", 31)], False, it[16:22])
        self.stage(a, 29, [], False, it[22:32])
        self.stage(a, 30, [], False, it[32:42])
        self.stage(a, 31, [], False, it[42:52])
        a.label("L_g1_epi")
        stamp(a, 15)

    def epilogue(self, g2=None):
        a = self.a
        if g2:
            a("s_barrier")
        pend = [x for n in (4, 5, 6, 7, 8) for x in g2.w_items(n)] if g2 else []
        self.nxt = 18

        def emit(k):
            for it in pend[:k]:
                for p in it[0]:
                    a(p)
                a(it[1])
            del pend[:k]

        def more(free_from):
            if not g2:
                return
            while self.nxt < 28 and g2.park(self.nxt)[1] >= free_from:
                pend.extend(g2.w_items(self.nxt))
                self.nxt += 1
            emit(geti("epl", 2))
        self.emit_rest = lambda: emit(len(pend))
        c0 = -2.0 * 0.7978845608028654 * 1.4426950408889634
        c1 = c0 * 0.044715
        a("s_mov_b32 s82, 0x%x", f2u(c1))
        a("s_mov_b32 s83, 0x%x", f2u(c1))
        a("s_mov_b32 s84, 1.0")
        a("s_mov_b32 s85, 1.0")
        a("v_mov_b32 v12, 0x%x", f2u(c0))
        a("v_mov_b32 v13, 0x%x", f2u(c0))
        acc = lambda n, j: self.ACC + 4 * (4 * n + j)
        T = 14

        def act(gs, us):
            for p in range(4):
                a("v_pk_mul_f32 %s, %s, %s", vr(T + 2 * p, 2), vr(gs[p], 2), vr(gs[p], 2))
            for p in range(4):
                a("v_pk_fma_f32 %s, %s, s[82:83], v[12:13]", vr(T + 2 * p, 2), vr(T + 2 * p, 2))
            for p in range(4):
                a("v_pk_mul_f32 %s, %s, %s", vr(T + 2 * p, 2), vr(T + 2 * p, 2), vr(gs[p], 2))
            for e in range(8):
                a("v_exp_f32 v%d, v%d", T + e, T + e)
            for p in range(4):
                a("v_pk_mul_f32 %s, %s, %s", vr(gs[p], 2), vr(gs[p], 2), vr(us[p], 2))
            for p in range(4):
                a("v_pk_add_f32 %s, %s, s[84:85]", vr(T + 2 * p, 2), vr(T + 2 * p, 2))
            for e in range(8):
                a("v_rcp_f32 v%d, v%d", T + e, T + e)
            for p in range(4):
                a("v_pk_mul_f32 %s, %s, %s", vr(gs[p], 2), vr(gs[p], 2), vr(T + 2 * p, 2))

        for jj in range(2):
            g0, u0, g1, u1 = acc(12, 2 * jj), acc(13, 2 * jj), acc(12, 2 * jj + 1), acc(13, 2 * jj + 1)
            gs = [g0, g0 + 2, g1, g1 + 2]
            act(gs, [u0, u0 + 2, u1, u1 + 2])
            for p in range(4):
                a("v_cvt_pk_bf16_f32 v%d, v%d, v%d", g0 + p, gs[p], gs[p] + 1)
            a("buffer_store_dwordx2 %s, v7, %s, s77 offen offset:%d sc1", vr(g0, 2), q4(R3), 2048 * jj)
            a("buffer_store_dwordx2 %s, v7, %s, s77 offen offset:%d sc1", vr(g0 + 2, 2), q4(R3), 2048 * jj + 1024)
            more(256)
        for m in (2, 1, 0):
            for j in range(4):
                g0, u0, g1, u1 = acc(4 * m, j), acc(4 * m + 1, j), acc(4 * m + 2, j), acc(4 * m + 3, j)
                gs = [g0, g0 + 2, g1, g1 + 2]
                act(gs, [u0, u0 + 2, u1, u1 + 2])
                for p in range(4):
                    a("v_cvt_pk_bf16_f32 v%d, v%d, v%d", g0 + p, gs[p], gs[p] + 1)
                if m == 0 and j == 3:
                    break
                a("buffer_store_dwordx4 %s, v%d, %s, s%d offen sc1", vr(g0, 4), 8 + j, q4(R3), 74 + m)
                more(acc(4 * m + 4, 0))
        a("buffer_store_dwordx4 %s, v%d, %s, s%d offen sc1", vr(g0, 4), 8 + j, q4(R3), 74 + m)
        self.keep = min(len(pend), geti("epk", 6))
        emit(self.keep)
        stamp(a, 16)


class G2:
    NST = 28
    WF, XF, ACC, HR = 0, 32, 32, 176
    NB, DIST, NX = 8, geti('dist', 5), 6

    def __init__(self, a):
        self.a = a
        self.vm = VM()
        self.waits = []

    def setup_w(self):
        a = self.a
        a("s_lshr_b32 s91, %s, 2", IDX)
        a("s_cmp_eq_u32 s91, 3")
        a("s_cselect_b32 s93, 9, 11")
        a("s_and_b32 s94, %s, 1", XCD)
        a("s_lshl_b32 s92, s94, 3")
        a("s_add_u32 s91, s91, s92")
        a("s_lshl_b32 s92, s91, 7")
        a("s_lshl_b32 s94, s94, 8")
        a("s_cmp_eq_u32 s93, 9")
        a("s_cselect_b32 s94, s94, s92")
        a("v_lshrrev_b32 v14, 3, v1")
        a("v_bfe_u32 v15, v1, 4, 2")
        a("v_lshlrev_b32 v15, 1, v15")
        a("v_and_b32 v16, 7, v1")
        a("v_xor_b32 v15, v15, v16")
        a("v_lshlrev_b32 v15, 4, v15")
        a("v_add_u32 v15, s94, v15")
        for i in range(4):
            a("v_add_u32 v%d, %d, v14", 22 + i, 8 * i)
            a("v_lshlrev_b32 v%d, s93, v%d", 22 + i, 22 + i)
            a("v_add_u32 v%d, v%d, v15", 22 + i, 22 + i)
        a("v_and_b32 v17, 31, v1")
        if geti("rot", 0):
            a("s_and_b32 s92, %s, 3", IDX)
            a("s_mul_i32 s92, s92, %d", geti("phia", 2))
            a("v_add_u32 v16, s92, v17")
            a("v_subrev_u32 v15, 24, v16")
            a("v_cmp_le_u32 vcc, 24, v16")
            a("v_cndmask_b32 v16, v16, v15, vcc")
            a("s_lshr_b32 s92, %s, 2", IDX)
            a("v_add_u32 v15, s92, v16")
            a("v_and_b32 v15, 7, v15")
            a("v_and_or_b32 v16, v16, 24, v15")
            a("v_cmp_le_u32 vcc, 24, v17")
            a("v_cndmask_b32 v17, v16, v17, vcc")
        a("v_lshlrev_b32 v14, 2, v17")
        a("v_mul_u32_u24 v2, %d, v17", 4 * BLK)
        a("v_add_u32 v14, %s, v14", WAVE)
        a("v_add_u32 v15, 3, v14")
        a("v_mul_u32_u24 v15, 10923, v15")
        a("v_lshrrev_b32 v15, 16, v15")
        a("v_add_u32 v15, v14, v15")
        a("v_cmp_le_u32 vcc, 96, v14")
        a("v_mul_u32_u24 v14, 7, v14")
        a("v_subrev_u32 v14, %d, v14", 7 * 96 - 3)
        a("v_cndmask_b32 v14, v15, v14, vcc")
        a("s_add_u32 s92, s93, 5")
        a("v_lshlrev_b32 v14, s92, v14")
        a("v_cmp_gt_u32 vcc, 32, v1")
        a("v_cndmask_b32 v2, v2, v14, vcc")
        a("s_lshl_b32 s89, %s, 12", WAVE)
        a("s_add_u32 s94, s%d, 0x%x", PWS, WS_WC)
        a("s_addc_u32 s95, s%d, 0", PWS + 1)
        a("s_cmp_eq_u32 s93, 9")
        a("s_cselect_b32 s%d, s94, s%d", R0, PWD)
        a("s_cselect_b32 s%d, s95, s%d", R0 + 1, PWD + 1)
        a("s_mov_b32 s94, 0x%x", F * D * 2)
        a("s_cselect_b32 s%d, 0x%x, s94", R0 + 2, WC_SZ)
        a("s_mov_b32 s%d, 0x20000", R0 + 3)
        a("s_lshr_b32 s92, %s, 1", XCD)
        a("s_lshl_b32 s92, s92, 2")
        a("s_and_b32 s94, %s, 3", IDX)
        a("s_add_u32 s92, s92, s94")

    def setup2(self):
        a = self.a
        a("s_and_b32 s72, %s, 1", WAVE)
        a("s_lshr_b32 s71, %s, 1", WAVE)
        a("s_lshl_b32 s73, s92, 1")
        a("s_add_u32 s73, s73, s72")
        frag_offsets(a, 8, 3, 4)
        a("s_mul_i32 s77, s73, %d", HH_BLK)
        a("s_mul_i32 s70, s71, %d", 2 * BLK)
        a("s_add_u32 s70, s70, s77")
        a("s_lshl_b32 s72, s71, 14")
        a("s_add_u32 s77, s77, s72")
        a("s_add_u32 s77, s77, %d", HH_SPLIT + 512)
        a("v_lshlrev_b32 v7, 3, v1")
        srd(a, R2, PWS, WS_HH, HH_SZ)
        a("v_lshrrev_b32 v3, 2, v1")
        a("s_lshl_b32 s72, s71, 6")
        a("v_add_u32 v4, s72, v3")
        a("v_lshlrev_b32 v4, 7, v4")
        a("v_and_b32 v5, 3, v1")
        a("v_lshl_add_u32 v4, v5, 3, v4")
        a("v_bfe_u32 v3, v1, 3, 2")
        a("v_lshlrev_b32 v3, 5, v3")
        a("v_xor_b32 v3, s72, v3")
        for t in range(4):
            a("v_xor_b32 v5, %d, v3", 32 * t)
            a("v_add_u32 v%d, v4, v5", 16 + t)
        a("v_lshlrev_b32 v20, 4, v1")
        a("v_add_u32 v20, s89, v20")
        srd(a, R4, POUT, 0, S * D * 2)
        srd(a, R1, PWS, WS_H, S * D * 2)
        a("v_and_b32 v6, 15, v1")
        a("s_lshl_b32 s74, s73, 6")
        a("v_add_u32 v6, s74, v6")
        a("v_lshlrev_b32 v6, 11, v6")
        a("s_lshl_b32 s74, s91, 7")
        a("s_add_u32 s74, s74, s72")
        a("v_add_u32 v6, s74, v6")
        a("v_bfe_u32 v5, v1, 4, 1")
        a("v_lshl_add_u32 v6, v5, 5, v6")
        a("v_lshrrev_b32 v5, 5, v1")
        a("v_lshl_add_u32 v6, v5, 4, v6")
        a("s_mov_b32 s74, 32768")
        a("s_mov_b32 s75, 65536")
        a("s_mov_b32 s76, 98304")

    def park(self, n):
        return ("a", 128 + 16 * (n - 10)) if n < 18 else ("v", 240 - 16 * (n - 18))

    def w_items(self, n):
        it = []
        for k in range(4):
            pre = []
            if k == 0:
                pre.append("v_readlane_b32 s95, v2, %d" % n)
                pre.append("s_mov_b32 s90, s95")
            if n < 10:
                pre.append("s_add_u32 m0, s89, %d" % (n * G2_STAGE + k * 1024))
                ld = "buffer_load_dwordx4 v%d, %s, s90 offen lds" % (22 + k, q4(R0))
            else:
                kind, r = self.park(n)
                ld = "buffer_load_dwordx4 %s[%d:%d], v%d, %s, s90 offen" % (kind, r + 4 * k, r + 4 * k + 3, 22 + k, q4(R0))
            it.append((pre, ld, ("V", n)))
        return it

    def issue_w(self, ns):
        for n in ns:
            for it in self.w_items(n):
                for p in it[0]:
                    self.a(p)
                self.a(it[1])

    def x_items(self, i):
        it = []
        n, q = i >> 1, i & 1
        r = self.XF + 16 * (i % self.NX)
        if n < 24:
            for j in range(4):
                pre = []
                if j == 0 and q:
                    pre.append("s_add_u32 s69, s69, %d" % BLK)
                if j == 0 and not q:
                    pre.append("v_readlane_b32 s64, v2, %d" % (32 + n))
                    pre.append("s_add_u32 s69, s64, s70")
                ld = "buffer_load_dwordx4 %s, v%d, %s, s69 offen %s" % (ar(r + 4 * j, 4), 8 + j, q4(R2), SC)
                it.append((pre, ld, ("X", i)))
        else:
            for h in range(2):
                for j in range(4):
                    pre = []
                    if j == 0:
                        pre.append("s_add_u32 s69, s77, %d" % ((4 * (n - 24) + q) * 8192 + 4096 * h))
                    ld = "buffer_load_dwordx2 %s, v7, %s, s69 offen offset:%d %s" % (
                        ar(r + 4 * j + 2 * h, 2), q4(R2), 1024 * j, SC)
                    it.append((pre, ld, ("X", i)))
        return it

    def issue_x(self, steps):
        for i in steps:
            for it in self.x_items(i):
                for p in it[0]:
                    self.a(p)
                self.a(it[1])
                self.vm.issue(it[2])

    def fb(self, f):
        return self.WF + 4 * (f % self.NB)

    def rd(self, f):
        i, t = f >> 2, f & 3
        slot = (i >> 1) % 10
        out = []
        base = (slot >> 2) * 65536
        if base != self.rbase[t]:
            out.append("v_add_u32 v%d, 0x%x, v%d" % (16 + t, (base - self.rbase[t]) & 0xffffffff, 16 + t))
            self.rbase[t] = base
        rs = ["ds_read_b64_tr_b16 %s, v%d offset:%d" % (
            ar(self.fb(f) + 2 * hh, 2), 16 + t, (slot & 3) * G2_STAGE + (32 * (i & 1) + 16 * hh) * 128) for hh in range(2)]
        return out, rs

    def first_reads(self):
        self.rbase = [0] * 4
        self.wbase = 0
        self.lq = []
        for f in range(self.DIST):
            for r in self.rd(f)[1]:
                self.a(r)
                self.lq.append(f)

    def lwait(self, f):
        last = max(k for k, x in enumerate(self.lq) if x == f)
        n = len(self.lq) - 1 - last
        assert n <= 15
        return n

    def main(self):
        a = self.a
        stamp(a, 19)
        NS = 2 * self.NST
        if "g2oob" in EXP:
            a("s_mov_b32 s98, 0x40000000")
        so = ["0", "s74", "s75", "s76"]
        for i in range(NS):
            gaps = [[] for _ in range(16)]
            lds = {}
            for t in range(4):
                f = 4 * i + t + self.DIST
                if f < 4 * NS:
                    mv, rs = self.rd(f)
                    gaps[4 * t] += mv
                    gaps[4 * t].append(rs[0])
                    gaps[4 * t + 1].append(rs[1])
                    lds[rs[0]] = lds[rs[1]] = f
            n = (i >> 1) + 6
            if 10 <= n < 28 and "g2nowr" not in EXP:
                kind, r = self.park(n)
                slot = n % 10
                base = (slot >> 2) * 65536
                if base != self.wbase:
                    gaps[1].append("v_add_u32 v20, 0x%x, v20" % ((base - self.wbase) & 0xffffffff))
                    self.wbase = base
                if geti("w64", 1):
                    for kk in range(4):
                        k, hf = 2 * (i & 1) + (kk >> 1), kk & 1
                        w = "ds_write_b64 v20, %s[%d:%d] offset:%d" % (kind, r + 4 * k + 2 * hf, r + 4 * k + 2 * hf + 1,
                                                                      (slot & 3) * G2_STAGE + 1024 * k + 8 * hf)
                        gaps[3 + 4 * kk].append(w)
                        lds[w] = -1
                else:
                    for kk in range(2):
                        k = 2 * (i & 1) + kk
                        w = "ds_write_b128 v20, %s[%d:%d] offset:%d" % (kind, r + 4 * k, r + 4 * k + 3,
                                                                       (slot & 3) * G2_STAGE + 1024 * k)
                        gaps[3 + 8 * kk].append(w)
                        lds[w] = -1
            items = self.x_items(i + self.NX - 1) if i + self.NX - 1 < NS else []
            if i == NS - self.NX + 1:
                items = [([], "buffer_load_dwordx4 %s, v6, %s, %s offen %s" % (vr(self.HR + 4 * j, 4), q4(R1), so[j], SC),
                          ("H", j)) for j in range(4)]
            slots = [2, 6, 10, 14] if len(items) <= 4 else [2, 3, 6, 7, 10, 11, 14, 15]
            place = place_loads(gaps, items, slots) if items else {}
            bar = i % 8 == 0 and 8 <= i <= 48
            a("s_waitcnt vmcnt(%d) lgkmcnt(%d)" % (self.vm.need([("X", i)]), 0 if bar else self.lwait(4 * i + 1)))
            if bar:
                a("s_barrier")
            for g in range(16):
                t, c = g >> 2, g & 3
                j = c if t % 2 == 0 else 3 - c
                acc = vr(self.ACC + 4 * (4 * t + j), 4)
                if g == 8:
                    a("s_waitcnt lgkmcnt(%d)" % self.lwait(4 * i + 3))
                a("v_mfma_f32_16x16x32_bf16 %s, %s, %s, %s" % (
                    acc, ar(self.fb(4 * i + t), 4), ar(self.XF + 16 * (i % self.NX) + 4 * j, 4), "0" if i == 0 else acc))
                for f in gaps[g]:
                    a(f)
                    if f in lds:
                        self.lq.append(lds[f])
                if g in place:
                    if "g2oob" in EXP:
                        a(place[g][1].replace("s69", "s98"))
                    elif "g2nold" not in EXP:
                        a(place[g][1])
                    self.vm.issue(place[g][2])
        stamp(a, 20)
        ACC, HR = self.ACC, self.HR
        a("v_lshlrev_b32 v11, 4, v1")
        a("s_lshl_b32 s64, %s, 13", WAVE)
        a("v_add_u32 v3, s64, v11")
        a("s_xor_b32 s64, s64, 0x4000")
        a("v_add_u32 v4, s64, v11")
        for i in range(8):
            a("ds_write_b128 v3, %s offset:%d", vr(ACC + 32 + 4 * i, 4), 1024 * i)
        HF = 112
        a("s_waitcnt vmcnt(0)")
        for i in range(16):
            unpack(a, HF + 2 * i, HR + i)
        a("s_waitcnt lgkmcnt(0)")
        a("s_barrier")
        R = 144
        for j in range(4):
            for t in range(2):
                i = 4 * t + j
                a("ds_read_b128 %s, v4 offset:%d", vr(R + 4 * i, 4), 1024 * i)
        for j in range(4):
            a("s_waitcnt lgkmcnt(%d)", 2 * (3 - j))
            t0, t1 = ACC + 4 * j, ACC + 16 + 4 * j
            for t, b in ((0, t0), (1, t1)):
                for p in range(2):
                    a("v_pk_add_f32 %s, %s, %s", vr(b + 2 * p, 2), vr(b + 2 * p, 2), vr(R + 4 * (4 * t + j) + 2 * p, 2))
            for r in range(4):
                a("v_permlane16_swap_b32 v%d, v%d", t0 + r, t1 + r)
            for t, b in ((0, t0), (1, t1)):
                for p in range(2):
                    a("v_pk_add_f32 %s, %s, %s", vr(b + 2 * p, 2), vr(b + 2 * p, 2), vr(HF + 8 * j + 4 * t + 2 * p, 2))
            a("v_cvt_pk_bf16_f32 v%d, v%d, v%d", t0, t0, t0 + 1)
            a("v_cvt_pk_bf16_f32 v%d, v%d, v%d", t0 + 1, t0 + 2, t0 + 3)
            a("v_cvt_pk_bf16_f32 v%d, v%d, v%d", t0 + 2, t1, t1 + 1)
            a("v_cvt_pk_bf16_f32 v%d, v%d, v%d", t0 + 3, t1 + 2, t1 + 3)
            a("buffer_store_dwordx4 %s, v6, %s, %s offen %s", vr(t0, 4), q4(R4), so[j], P.get("omod", ""))
        stamp(a, 21)


FIRST_SEP = [[("X", 1), ("W", 2), ("X", 2)], [("W", 3), ("X", 3), ("W", 4)],
             [("X", 4), ("W", 5), ("X", 5), ("W", 6)], [("W", 7), ("X", 6)]]
FIRST_FUS = [[("X", 2), ("W", 4), ("X", 3)], [("W", 5), ("X", 4)], [("W", 6), ("X", 5)], [("W", 7), ("X", 6)]]


def finish(a, end, kidx):
    stamp_flush(a, kidx, 31)
    a.label(end)
    a("s_endpgm")
    if FUSED:
        a.label("L_code_end")
    return a


def gen_separate():
    ks = []
    a = Asm(); prologue(a, "L_e0"); phase_pre(a)
    ks.append(("pre_kernel", finish(a, "L_e0", 0)))
    a = Asm(); prologue(a, "L_e1"); a("s_waitcnt lgkmcnt(0)"); load_h(a); u_setup(a); load_u(a)
    a("s_waitcnt vmcnt(4)"); stamp(a, 3); build_h(a); bg = conv_setup(a); stamp(a, 4); phase_conv(a, bg)
    ks.append(("conv_kernel", finish(a, "L_e1", 1)))
    a = Asm(); prologue(a, "L_e2"); a("s_waitcnt lgkmcnt(0)")
    for l in load_x(a):
        a(l)
    y_setup(a); load_y(a)
    a("s_waitcnt vmcnt(8)"); stamp(a, 8); x_stats(a); ln_prepare(a); stamp(a, 9); phase_ln(a)
    ks.append(("ln_kernel", finish(a, "L_e2", 2)))
    a = Asm(); prologue(a, "L_e3"); a("s_waitcnt lgkmcnt(0)"); g = G1(a); g.setup_w(); g.issue([("W", 0)]); g.setup2()
    g.issue([("X", 0), ("W", 1)]); g.first_reads(); g.main(FIRST_SEP); g.epilogue()
    ks.append(("gemm1_kernel", finish(a, "L_e3", 3)))
    a = Asm(); prologue(a, "L_e4"); a("s_waitcnt lgkmcnt(0)"); g = G2(a); g.setup_w(); g.issue_w(range(28)); g.setup2()
    a("s_waitcnt vmcnt(0)"); a("s_barrier"); g.first_reads(); g.issue_x(range(5)); g.main()
    ks.append(("gemm2_kernel", finish(a, "L_e4", 4)))
    return ks


def gen_fused():
    a = Asm()
    prologue(a, "L_end")
    if geti("ct", 1):
        code_touch(a, R5, 30, "L_pc", "a")
    phase_pre(a)
    a("v_readfirstlane_b32 s64, v28")
    a("s_mul_i32 %s, s64, 0x9e3779b1", TAG)
    a("s_add_u32 %s, %s, 0x7f4a7c15", TAG, TAG)
    flag_base(a, 1)
    build_h(a)
    signal(a, 1, XCD, IDX)
    stamp(a, 3)
    bg = conv_setup(a)
    u_setup(a)
    await_(a, 1, XCD)
    stamp(a, 4)
    load_u(a)
    phase_conv(a, bg)
    flag_base(a, 2)
    x_unpack(a)
    signal(a, 2, XCD, IDX)
    stamp(a, 8)
    g = G1(a)
    g.setup_w()
    g.issue([("W", 0), ("W", 1), ("W", 2), ("W", 3)])
    ln_stats(a, XF, LT, 0, 20)
    ln_prepare(a)
    y_setup(a)
    await_(a, 2, None)
    stamp(a, 9)
    load_y(a)
    phase_ln(a)
    g.setup2()
    g2 = G2(a)
    g2.setup_w()
    flag_base(a, 3)
    signal(a, 3, "s72", "s71", 4)
    stamp(a, 12)
    g.first_reads(False)
    await_(a, 3, "s72")
    stamp(a, 13)
    g.issue([("X", 0), ("X", 1)])
    g.main(FIRST_FUS, g2)
    a("s_cmp_lg_u32 s2, 0")
    a("s_cbranch_scc1 L_noepoch")
    flag_base(a, 0)
    a("v_mov_b32 v28, %s", TAG)
    a("s_mov_b64 exec, 1")
    a("buffer_store_dword v28, off, %s, 0 sc0 sc1", q4(RF))
    a("s_mov_b64 exec, -1")
    a.label("L_noepoch")
    g.epilogue(g2)
    flag_base(a, 4)
    a("s_mov_b32 s82, s72")
    a("s_mov_b32 s83, s71")
    g2.setup2()
    signal(a, 4, "s82", "s83", g.keep)
    stamp(a, 17)
    g.emit_rest()
    g2.first_reads()
    a("s_lshr_b32 s68, s92, 1")
    await_(a, 4, "s68")
    stamp(a, 18)
    g2.issue_x(range(5))
    g2.main()
    return [(NAME + "_kernel", finish(a, "L_end", 0))]


def build(path):
    ks = gen_fused() if FUSED else gen_separate()
    out = HEADER
    for name, _ in ks:
        if FUSED and not geti("aslist", 0):
            out += "; @launch grid=(256,1,1) block=(256,1,1) lds=%d\n" % LDS_ALL
        else:
            out += "; @launch kernel=%s grid=(256,1,1) block=(256,1,1) lds=%d\n" % (name, LDS_ALL)
    out += '.amdgcn_target "amdgcn-amd-amdhsa--gfx950"\n'
    descs = ""
    for name, a in ks:
        code, desc, info = kernel_text(name, a)
        print(name, "vgpr/agpr/sgpr", info, "insts", len(a.ins), file=sys.stderr)
        out += code
        descs += desc
    out += descs
    open(path, "w").write(out)


if __name__ == "__main__":
    build(sys.argv[1] if len(sys.argv) > 1 else "cdna_kernels/" + NAME + ".s")
```

```python
import sys, os, struct
sys.path.insert(0, os.path.dirname(os.path.abspath(__file__)))
from asmlib import Asm, vr, sr, ar, kernel_text

S, D, F = 2048, 1024, 3584
MB = 1 << 20
WS_YB, WS_H, WS_XT, WS_WC, WS_FL, WS_HH, WS_UB, WS_END, WS_ST = 0, 6 * MB, 10 * MB, 20 * MB, 23 * MB, 24 * MB, 46 * MB, 52 * MB, 64 * MB
BLK = 5120
HH_SPLIT = 96 * BLK
HH_BLK = HH_SPLIT + 16 * 8192
WC_SZ = F * 512
STAMP = bool(int(os.environ.get("STAMP", "0")))
EXP = os.environ.get("EXP", "").split(",")
P = dict(kv.split("=") for kv in os.environ.get("P", "").split(",") if kv)
geti = lambda k, d: int(P.get(k, d))
f2u = lambda x: struct.unpack("<I", struct.pack("<f", x))[0]
HERE = os.path.dirname(os.path.abspath(__file__))
NAME = "sequential_preLN__ssm_conv_h3__glu_gated_geglu__prompt"
HEADER = open(os.path.join(HERE, "..", "cdna_kernels", NAME + ".s.ref")).read().split("; Override")[0]
POS = [0, 1, 2, 4]
PQ, PK, PV, PSH, PSK, PSD, PWG, PWU, PWD, POUT, PWS = 8, 10, 12, 14, 16, 18, 22, 24, 26, 28, 32
XCD, IDX, WAVE, TAG, RG = "s3", "s4", "s5", "s34", "s35"
R0, R1, RW, R3, R4, R5, R6 = 36, 40, 44, 48, 52, 56, 60
q4 = lambda r: "s[%d:%d]" % (r, r + 3)
WS = q4(RW)
NT = P.get("nt", "nt")
XA, HA = 192, 208

HS, US = 4160, 4576
UOFF = 4 * HS
CH = UOFF + 2 * US
L_KT = 4 * CH
L_VT = L_KT + 68 * 256
G1_GP = 1088
G1_UP = 8 * G1_GP
G1_STAGE = 16 * G1_GP
G2_STAGE = 16384
L_ST = 8 * G1_STAGE
LDS_ALL = 10 * G2_STAGE
assert L_VT + 16384 <= L_ST


class Cap:
    def __init__(self):
        self.l = []

    def __call__(self, fmt, *a):
        self.l += [x.strip() for x in (fmt % a if a else fmt).split("\n") if x.strip()]


class Null:
    def __call__(self, *a):
        pass


class VM:
    def __init__(self):
        self.q = []

    def issue(self, tag):
        self.q.append(tag)

    def need(self, tags):
        idx = [i for i, t in enumerate(self.q) if t in tags]
        assert len(set(self.q[i] for i in idx)) == len(set(tags)), (tags, self.q[-40:])
        n = len(self.q) - 1 - max(idx)
        assert n <= 63
        return n


def srd(a, dst, ptr, off, size):
    if off:
        a("s_add_u32 s%d, s%d, 0x%x\ns_addc_u32 s%d, s%d, 0", dst, ptr, off, dst + 1, ptr + 1)
    else:
        a("s_mov_b32 s%d, s%d", dst, ptr)
        a("s_mov_b32 s%d, s%d", dst + 1, ptr + 1)
    a("s_mov_b32 s%d, 0x%x", dst + 2, size)
    a("s_mov_b32 s%d, 0x20000", dst + 3)


def stamp(a, k):
    if STAMP:
        a("s_memtime s[96:97]")
        a("s_memrealtime s[98:99]")
        a("s_waitcnt lgkmcnt(0)")
        a("v_writelane_b32 v31, s96, %d", k)
        a("v_writelane_b32 v31, s98, %d", 32 + k)


def unpack(a, dst, src):
    a("v_lshlrev_b32 v%d, 16, v%d", dst, src)
    a("v_and_b32 v%d, 0xffff0000, v%d", dst + 1, src)


def line_offset(a, dst, line, t):
    a("s_lshr_b32 s%d, s%d, 3", t, line)
    a("s_cmp_eq_u32 s%d, 3", t)
    a("s_cselect_b32 s%d, 4, s%d", t, t)
    a("s_add_u32 s%d, s%d, 32", t, t)
    a("s_and_b32 s%d, s%d, 7", dst, line)
    a("s_cmp_eq_u32 s%d, 3", dst)
    a("s_cselect_b32 s%d, s%d, s%d", dst, t, line)
    a("s_lshl_b32 s%d, s%d, 7", dst, dst)


def frag_offsets(a, dst, t0, t1):
    a("v_lshlrev_b32 v%d, 4, v1", t0)
    a("v_and_b32 v%d, 0x70, v%d", t1, t0)
    a("v_and_b32 v%d, 56, v1", dst)
    a("v_cmp_eq_u32 vcc, 24, v%d", dst)
    for j in range(4):
        a("v_add_u32 v%d, %d, v%d", dst + j, 1024 * j, t0)
    for j in range(4):
        a("v_add_u32 v%d, %d, v%d", t0, 4096 + 128 * POS[j], t1)
        a("v_cndmask_b32 v%d, v%d, v%d, vcc", dst + j, dst + j, t0)


PUSH = geti("push", 1)
REP = geti("rep", 8)
FLK = lambda k: WS_FL + 65536 * k


def flag_store(a, k, grp, member, wave=0):
    a("s_cmp_lg_u32 %s, %d", WAVE, wave)
    a("s_cbranch_scc1 L_sig%d", k)
    a("s_lshl_b32 s100, %s, %d", grp, 13 if (PUSH and k != 2) else 8)
    a("s_lshl_b32 s101, %s, 2", member)
    a("s_add_u32 s100, s100, s101")
    a("s_add_u32 s100, s100, 0x%x", FLK(k))
    n = REP if k == 2 else (32 if PUSH else 1)
    a("v_lshlrev_b32 v29, %d, v1", 11 if k == 2 else 8)
    a("s_mov_b32 exec_lo, 0x%x", (1 << n) - 1)
    a("s_mov_b32 exec_hi, 0")
    a("buffer_store_dword v28, v29, %s, s100 offen sc1", WS)
    a("s_mov_b64 exec, -1")
    a("v_and_b32 v29, 31, v1")
    a("v_lshlrev_b32 v29, 2, v29")
    a.label("L_sig%d" % k)


def signal(a, k, grp, member, keep=0):
    a("s_waitcnt vmcnt(%d)", keep)
    a("s_barrier")
    flag_store(a, k, grp, member, geti("sigw", 1))


def inbox(a, k, grp, me, sreg):
    if PUSH:
        a("s_lshl_b32 s%d, %s, 5", sreg, grp)
        a("s_add_u32 s%d, s%d, %s", sreg, sreg, me)
        a("s_lshl_b32 s%d, s%d, 8", sreg, sreg)
    else:
        a("s_lshl_b32 s%d, %s, 8", sreg, grp)
    a("s_add_u32 s%d, s%d, 0x%x", sreg, sreg, FLK(k))


def poll(a, k, grp, me):
    a("s_cmp_lg_u32 %s, 0", WAVE)
    a("s_cbranch_scc1 L_got%d", k)
    if grp is None:
        a("v_lshrrev_b32 v29, 3, v1")
        a("v_lshlrev_b32 v29, 8, v29")
        a("v_and_b32 v30, 7, v1")
        a("v_lshl_add_u32 v29, v30, 4, v29")
        a("s_and_b32 s100, s2, %d", REP - 1)
        a("s_lshl_b32 s100, s100, 11")
        a("s_add_u32 s100, s100, 0x%x", FLK(k))
    else:
        a("v_and_b32 v29, 31, v1")
        a("v_lshlrev_b32 v29, 2, v29")
        inbox(a, k, grp, me, 100)
    a("s_mov_b32 s101, 0")
    a.label("L_poll%d" % k)
    if grp is None:
        a("buffer_load_dwordx4 v[244:247], v29, %s, s100 offen sc1", WS)
        a("s_waitcnt vmcnt(0)")
        a("v_xor_b32 v244, %s, v244", TAG)
        a("v_xor_b32 v245, %s, v245", TAG)
        a("v_xor_b32 v246, %s, v246", TAG)
        a("v_xor_b32 v247, %s, v247", TAG)
        a("v_or_b32 v244, v244, v245")
        a("v_or3_b32 v244, v244, v246, v247")
        a("v_cmp_ne_u32 vcc, 0, v244")
    else:
        a("buffer_load_dword v30, v29, %s, s100 offen sc1", WS)
        a("s_waitcnt vmcnt(0)")
        a("v_cmp_ne_u32 vcc, %s, v30", TAG)
    a("s_nop 4")
    a("s_cbranch_vccz L_got%d", k)
    if geti("slp", 0):
        a("s_sleep %d", geti("slp", 0))
    a("s_add_u32 s101, s101, 1")
    a("s_cmp_lt_u32 s101, 0x8000")
    a("s_cbranch_scc1 L_poll%d", k)
    a.label("L_got%d" % k)


def early_setup(a, k, grp, me, sreg):
    a("v_and_b32 v29, 31, v1")
    a("v_lshlrev_b32 v29, 2, v29")
    inbox(a, k, grp, me, sreg)


def early_load(sreg):
    return "buffer_load_dword v30, v29, %s, s%d offen sc1" % (WS, sreg)


def early_check(a, k, sreg, keep):
    a("s_mov_b32 s101, 0")
    a("s_waitcnt vmcnt(%d)", keep)
    a.label("L_poll%d" % k)
    a("v_cmp_ne_u32 vcc, %s, v30", TAG)
    a("s_nop 4")
    a("s_cbranch_vccz L_got%d", k)
    a(early_load(sreg))
    a("s_add_u32 s101, s101, 1")
    a("s_cmp_lt_u32 s101, 0x8000")
    a("s_waitcnt vmcnt(0)")
    a("s_cbranch_scc1 L_poll%d", k)
    a.label("L_got%d" % k)


def await_(a, k, grp, me=None):
    poll(a, k, grp, me)
    a("s_barrier")


def code_touch(a, r, vtmp, lo, tag):
    a("s_cmp_lg_u32 %s, 3", WAVE)
    a("s_cbranch_scc1 L_ct%s", tag)
    a("s_add_u32 s%d, s6, %s-L_pc", r, lo)
    a("s_addc_u32 s%d, s7, 0", r + 1)
    a("s_mov_b32 s%d, L_code_end-%s", r + 2, lo)
    a("s_mov_b32 s%d, 0x20000", r + 3)
    a("s_lshl_b32 s100, %s, 7", IDX)
    a("v_lshlrev_b32 v%d, 12, v1", vtmp)
    a("buffer_load_dword v%d, v%d, %s, s100 offen", vtmp, vtmp, q4(r))
    a.label("L_ct%s" % tag)


HP = 40
VA, VB, VYW, VUR, VCK, VT0, VT1, VWS, VHO, VXT, VYO, VT2, VWD = 240, 241, 242, 243, 244, 245, 246, 247, 248, 249, 250, 251, 252


XEARLY = geti("xearly", 0)
TLB = geti("tlb", 0)
x_loads = lambda r: ["buffer_load_dwordx4 %s, v%d, %s, 0 offen offset:%d %s" % (ar(XA + 4 * i, 4), VHO, q4(r), 512 * i, NT)
                     for i in range(4)]


def phase_pre(a):
    a("s_cmp_ge_u32 s2, 256")
    a("s_cbranch_scc1 L_end")
    a("s_load_dwordx16 s[8:23], s[0:1], 0")
    a("s_load_dwordx8 s[24:31], s[0:1], 64")
    a("s_load_dwordx2 s[32:33], s[0:1], 96")
    a("s_getpc_b64 s[6:7]")
    a.label("L_pc")
    a("v_lshrrev_b32 v2, 6, v0")
    a("v_and_b32 v1, 63, v0")
    a("v_readfirstlane_b32 s5, v2")
    a("s_and_b32 s3, s2, 7")
    a("s_lshr_b32 s4, s2, 3")
    if STAMP:
        a("v_mov_b32 v31, 0")
        stamp(a, 0)
    if geti("ct", 1):
        code_touch(a, R1, 30, "L_pc", "a")
    a("s_lshl_b32 s64, %s, 6", IDX)
    a("s_lshl_b32 s65, %s, 4", WAVE)
    a("s_add_u32 s64, s64, s65")
    a("v_lshrrev_b32 v12, 4, v1")
    a("v_add_u32 v13, s64, v12")
    a("v_lshlrev_b32 v13, 11, v13")
    a("v_and_b32 v14, 15, v1")
    a("s_lshl_b32 s65, %s, 2", WAVE)
    a("v_xor_b32 v15, s65, v14")
    a("v_lshl_add_u32 v13, v15, 4, v13")
    a("s_lshl_b32 s66, %s, 8", XCD)
    a("v_add_u32 v13, s66, v13")
    a("v_xor_b32 v15, 32, v13")
    a("v_xor_b32 v14, 14, v14")
    a("v_lshlrev_b32 v12, 11, v12")
    a("v_lshl_add_u32 v14, v14, 4, v12")
    a("s_lshl_b32 s67, %s, 17", IDX)
    a("s_add_u32 s67, s67, s66")
    a("s_sub_u32 s67, s67, 8192")
    a("s_cmp_eq_u32 %s, 0", IDX)
    a("s_cselect_b32 s67, 0x40000000, s67")
    a("s_lshl_b32 s68, %s, 12", WAVE)
    a("s_mov_b32 s74, 8192")
    a("s_mov_b32 s75, 16384")
    a("s_mov_b32 s76, 24576")
    a("v_lshrrev_b32 v16, 3, v0")
    a("s_lshl_b32 s65, %s, 5", XCD)
    a("v_add_u32 v17, s65, v16")
    a("v_lshlrev_b32 v12, 5, v17")
    for r in (R3, R6):
        a("s_mov_b32 s%d, 0x%x", r + 2, S * D * 2)
        a("s_mov_b32 s%d, 0x20000", r + 3)
    a("s_waitcnt lgkmcnt(0)")
    for r, p in ((R3, PK), (R6, PV)):
        a("s_mov_b32 s%d, s%d", r, p)
        a("s_mov_b32 s%d, s%d", r + 1, p + 1)
    so = ["0", "s74", "s75", "s76"]
    for base, r in ((L_KT + 1024, R3), (L_VT, R6)):
        for n in range(4):
            a("s_add_u32 m0, s68, %d", base + 1024 * n)
            a("buffer_load_dwordx4 %s, %s, %s offen %s lds", "v15" if n >= 2 else "v13", q4(r), so[n], NT)
    a("s_cmp_lg_u32 %s, 0", WAVE)
    a("s_cbranch_scc1 L_pre_nohalo")
    a("s_mov_b32 m0, %d", L_KT)
    a("buffer_load_dwordx4 v14, %s, s67 offen %s lds", q4(R3), NT)
    a.label("L_pre_nohalo")
    WR = 32
    srd(a, R0, PSH, 0, D * 8)
    a("buffer_load_dwordx4 %s, v12, %s, 0 offen", vr(WR, 4), q4(R0))
    a("buffer_load_dwordx4 %s, v12, %s, 0 offen offset:16", vr(WR + 4, 4), q4(R0))
    srd(a, RW, PWS, 0, WS_END)
    a("s_mov_b32 s64, 0x%x", WS_FL)
    a("buffer_load_dword v28, off, %s, s64 sc0 sc1", WS)
    srd(a, R4, PSK, 0, D * S * 2)
    a("s_lshl_b32 s70, %s, 5", XCD)
    a("s_add_u32 s70, s70, %s", IDX)
    a("s_lshl_b32 s64, s70, 3")
    a("s_load_dwordx2 s[30:31], %s, s64", sr(PSD, 2))
    a("s_lshl_b32 s71, s70, 2")
    a("s_add_u32 s71, s71, %s", WAVE)
    a("s_lshl_b32 s64, s71, 12")
    a("v_lshlrev_b32 v12, 4, v1")
    for i in range(4):
        a("buffer_load_dwordx4 %s, v12, %s, s64 offen offset:%d %s", vr(HP + 6 * i + 2, 4), q4(R4), 1024 * i, NT)
    a("s_and_b32 %s, %s, 7", RG, IDX)
    a("s_lshl_b32 %s, %s, 3", RG, RG)
    a("s_add_u32 %s, %s, %s", RG, RG, XCD)
    a("s_lshl_b32 %s, %s, 2", RG, RG)
    a("s_lshr_b32 s64, %s, 3", IDX)
    a("s_add_u32 %s, %s, s64", RG, RG)
    srd(a, R5, PQ, 0, S * D * 2)
    a("v_and_b32 v18, 7, v0")
    a("v_lshlrev_b32 v12, 11, v18")
    a("v_lshl_add_u32 v12, v16, 4, v12")
    a("s_lshl_b32 s64, %s, 14", RG)
    a("v_add_u32 v%d, s64, v12", VHO)
    later = 5
    if TLB:
        a("v_lshlrev_b32 v12, 20, v1")
        for n, tab in enumerate((((PWS, WS_END), (PWG, D * F * 2), (PWD, D * F * 2), (POUT, S * D * 2)),
                                 ((PWS, 0), (PWU, D * F * 2), (PQ, S * D * 2), (PWS, 0)))):
            srd(a, R0, tab[0][0], 0, tab[0][1])
            for w in range(1, 4):
                a("s_cmp_eq_u32 %s, %d", WAVE, w)
                a("s_cselect_b32 s%d, s%d, s%d", R0, tab[w][0], R0)
                a("s_cselect_b32 s%d, s%d, s%d", R0 + 1, tab[w][0] + 1, R0 + 1)
                a("s_cselect_b32 s%d, 0x%x, s%d", R0 + 2, tab[w][1], R0 + 2)
            a("buffer_load_dword v29, v12, %s, 0 offen nt", q4(R0))
        later += 2
    if XEARLY:
        for l in x_loads(R5):
            a(l)
        later += 4
    a("v_lshrrev_b32 v12, 1, v16")
    a("v_lshlrev_b32 v13, 1, v18")
    a("v_xor_b32 v19, v12, v13")
    a("v_add_u32 v13, 14, v13")
    a("v_and_b32 v13, 14, v13")
    a("v_xor_b32 v20, v12, v13")
    a("v_and_b32 v12, 1, v16")
    a("v_lshlrev_b32 v12, 3, v12")
    a("v_lshl_add_u32 v12, v18, 11, v12")
    a("v_add_u32 v12, %d, v12", L_KT)
    a("v_lshl_add_u32 v19, v19, 4, v12")
    a("v_lshl_add_u32 v20, v20, 4, v12")
    a("v_mul_u32_u24 v21, %d, v17", 4 * BLK)
    a("v_lshlrev_b32 v12, 4, v18")
    a("v_sub_u32 v21, v21, v12")
    a("s_sub_u32 s65, 31, %s", IDX)
    line_offset(a, 64, 65, 66)
    a("s_add_u32 s64, s64, 0x%x", WS_UB + 112)
    a("v_add_u32 v21, s64, v21")
    a("s_mov_b32 s74, %d", BLK)
    a("s_mov_b32 s75, %d", 2 * BLK)
    a("s_mov_b32 s76, %d", 3 * BLK)
    conv_setup(a)
    KR, VR, WTF, KF, VF, KS = 64, 86, 102, 118, 162, 194
    a("s_waitcnt vmcnt(%d)", later)
    a("s_barrier")
    stamp(a, 1)
    for j in range(3):
        a("ds_read_b64 %s, v20 offset:%d", vr(KR + 2 * j, 2), 256 * (1 + j))
    for j in range(8):
        a("ds_read_b64 %s, v19 offset:%d", vr(KR + 6 + 2 * j, 2), 256 * (4 + j))
    for j in range(3):
        a("ds_read_b64 %s, v19 offset:%d", vr(VR + 2 * j, 2), L_VT - L_KT + 256 * j)
    for c in range(4):
        for j in range(4):
            src = WR + 2 * c + (j >> 1)
            if j & 1:
                a("v_and_b32 v%d, 0xffff0000, v%d", WTF + 4 * j + c, src)
            else:
                a("v_lshlrev_b32 v%d, 16, v%d", WTF + 4 * j + c, src)
    a("s_waitcnt lgkmcnt(3)")
    for j in range(3, 8):
        a("ds_read_b64 %s, v19 offset:%d", vr(VR + 2 * j, 2), L_VT - L_KT + 256 * j)
    for j in range(11):
        unpack(a, KF + 4 * j, KR + 2 * j)
        unpack(a, KF + 4 * j + 2, KR + 2 * j + 1)
    a("s_waitcnt lgkmcnt(0)")
    for jp in range(4):
        js = (2 * jp, 2 * jp + 1)
        for j in js:
            unpack(a, VF + 4 * j, VR + 2 * j)
            unpack(a, VF + 4 * j + 2, VR + 2 * j + 1)
        ks = lambda j, p: vr(KS + 4 * (j & 1) + 2 * p, 2)
        for j in js:
            for p in range(2):
                a("v_pk_mul_f32 %s, %s, %s", ks(j, p), vr(KF + 4 * j + 2 * p, 2), vr(WTF + 12 + 2 * p, 2))
        for tap in (2, 1, 0):
            for j in js:
                for p in range(2):
                    a("v_pk_fma_f32 %s, %s, %s, %s", ks(j, p), vr(KF + 4 * (j + 3 - tap) + 2 * p, 2),
                      vr(WTF + 4 * tap + 2 * p, 2), ks(j, p))
        for j in js:
            for p in range(2):
                a("v_pk_mul_f32 %s, %s, %s", vr(VF + 4 * j + 2 * p, 2), ks(j, p), vr(VF + 4 * j + 2 * p, 2))
    W = 64
    for c in range(4):
        for n in range(4):
            a("v_cvt_pk_bf16_f32 v%d, v%d, v%d", W + 4 * c + n, VF + 4 * (7 - 2 * n) + c, VF + 4 * (6 - 2 * n) + c)
        a("buffer_store_dwordx4 %s, v21, %s, %s offen sc1", vr(W + 4 * c, 4), WS, so[c])
    a("s_waitcnt vmcnt(%d)", later - 1)
    stamp(a, 2)
    a("v_readfirstlane_b32 s64, v28")
    a("s_mul_i32 %s, s64, 0x9e3779b1", TAG)
    a("s_add_u32 %s, %s, 0x7f4a7c15", TAG, TAG)
    a("v_mov_b32 v28, %s", TAG)


def conv_setup(a):
    a("s_mul_i32 s69, %s, %d", WAVE, CH)
    a("v_lshlrev_b32 v12, 4, v1")
    a("v_add_u32 v%d, s69, v12", VCK)
    a("v_mov_b32 v2, 0")
    a("v_mov_b32 v3, 0")
    a("v_bfe_u32 v12, v1, 3, 2")
    a("v_mul_u32_u24 v12, %d, v12", HS)
    a("v_and_b32 v13, 7, v1")
    a("v_min_u32 v13, 5, v13")
    a("v_lshl_add_u32 v12, v13, 3, v12")
    a("v_add_u32 v12, s69, v12")
    a("ds_write_b64 v12, v[2:3]")
    a("v_min_u32 v13, 56, v1")
    a("v_lshlrev_b32 v13, 3, v13")
    a("v_add_u32 v13, s69, v13")
    a("ds_write_b64 v13, v[2:3] offset:%d", UOFF + 4088)
    a("ds_write_b64 v13, v[2:3] offset:%d", UOFF + US + 4096)
    a("v_and_b32 v12, 3, v1")
    a("v_mul_u32_u24 v12, %d, v12", HS)
    a("v_bfe_u32 v13, v1, 2, 2")
    a("v_lshrrev_b32 v14, 4, v1")
    a("v_add_u32 v13, v13, v14")
    a("v_lshl_add_u32 v12, v13, 4, v12")
    a("v_add_u32 v%d, s69, v12", VA)
    a("v_and_b32 v12, 1, v1")
    a("v_bfe_u32 v13, v1, 1, 3")
    a("v_mul_u32_u24 v15, %d, v12", US)
    a("v_lshlrev_b32 v13, 2, v13")
    a("v_sub_u32 v16, v14, v13")
    a("v_add_u32 v16, 28, v16")
    a("v_lshl_add_u32 v15, v16, 4, v15")
    a("v_add_u32 v%d, s69, v15", VB)
    a("v_add_u32 v13, v13, v14")
    a("v_lshlrev_b32 v16, 4, v13")
    a("v_lshl_add_u32 v16, v12, 3, v16")
    a("v_add_u32 v%d, s69, v16", VYW)
    a("v_sub_u32 v16, %d, v16", 31 * 16 + 8)
    a("v_add_u32 v%d, s69, v16", VUR)
    frag_offsets(a, 8, 12, 13)
    a("s_mul_i32 s83, s71, %d", BLK)
    a("s_add_u32 s83, s83, 0x%x", WS_UB)
    a("s_and_b32 s64, %s, 1", WAVE)
    a("s_cmp_eq_u32 s64, 0")
    a("s_cselect_b32 s%d, s%d, s%d", R1, PWG, PWU)
    a("s_cselect_b32 s%d, s%d, s%d", R1 + 1, PWG + 1, PWU + 1)
    a("s_mov_b32 s%d, 0x%x", R1 + 2, D * F * 2)
    a("s_mov_b32 s%d, 0x20000", R1 + 3)
    a("v_lshrrev_b32 v3, 3, v1")
    a("v_mul_u32_u24 v3, 7168, v3")
    a("v_and_b32 v12, 7, v1")
    a("v_min_u32 v12, 6, v12")
    a("v_lshl_add_u32 v3, v12, 7, v3")
    a("s_lshl_b32 s64, %s, 1", IDX)
    a("s_lshr_b32 s65, %s, 1", WAVE)
    a("s_add_u32 s64, s64, s65")
    a("s_mul_i32 s88, s64, %d", 8 * 7168)
    a("s_mul_i32 s65, %s, 896", XCD)
    a("s_add_u32 s88, s88, s65")
    a("v_lshrrev_b32 v12, 4, v0")
    a("s_mul_i32 s64, s2, 14")
    a("v_add_u32 v13, s64, v12")
    a("v_bfe_u32 v14, v0, 3, 1")
    a("v_and_b32 v15, 7, v0")
    a("v_lshlrev_b32 v16, 11, v13")
    a("v_lshl_add_u32 v16, v14, 10, v16")
    a("v_lshl_add_u32 v16, v15, 4, v16")
    a("v_add_u32 v16, 384, v16")
    a("v_lshlrev_b32 v17, 9, v13")
    a("v_lshl_add_u32 v17, v14, 8, v17")
    a("v_lshl_add_u32 v17, v15, 4, v17")
    a("v_add_u32 v17, 0x%x, v17", WS_WC)
    a("v_mov_b32 v15, 0x7fff0000")
    a("v_cmp_le_u32 vcc, 14, v12")
    a("v_cndmask_b32 v%d, v16, v15, vcc", VT1)
    a("v_cndmask_b32 v%d, v17, v15, vcc", VWS)
    a("s_lshl_b32 s64, %s, 10", WAVE)
    a("v_lshlrev_b32 v12, 2, v1")
    a("v_add_u32 v%d, s64, v12", VT0)
    a("v_add_u32 v%d, %d, v%d", VT2, 2 * CH, VT0)
    a("v_lshrrev_b32 v12, 2, v1")
    a("v_mul_u32_u24 v12, %d, v12", 4 * BLK)
    a("v_and_b32 v13, 3, v1")
    a("v_lshl_add_u32 v12, v13, 4, v12")
    a("s_bfe_u32 s65, s70, 0x50001")
    line_offset(a, 64, 65, 66)
    a("s_lshr_b32 s65, s70, 6")
    a("s_mul_i32 s65, s65, %d", BLK)
    a("s_add_u32 s64, s64, s65")
    a("s_and_b32 s65, s70, 1")
    a("s_lshl_b32 s65, s65, 6")
    a("s_add_u32 s64, s64, s65")
    a("s_mul_i32 s65, %s, %d", WAVE, 64 * 4 * BLK)
    a("s_add_u32 s64, s64, s65")
    a("v_add_u32 v4, s64, v12")
    a("s_mov_b32 s20, 0x05040100")
    a("s_mov_b32 s21, 0x07060302")
    a("s_waitcnt lgkmcnt(0)")
    a("s_cmp_ge_u32 %s, 2", WAVE)
    a("s_cselect_b32 s84, s31, s30")
    a("s_and_b32 s85, %s, 1", WAVE)
    a("s_xor_b32 s85, s85, 1")
    a("s_lshl_b32 s85, s85, 4")
    a("s_lshl_b32 s84, s84, s85")
    a("s_and_b32 s84, s84, 0xffff0000")
    a("s_mov_b32 s85, s84")


def build_h(a):
    for i in range(4):
        M0, M1, P0, P1, P2, P3 = [HP + 6 * i + x for x in range(6)]
        a("ds_write_b128 v%d, %s offset:%d", VCK, vr(P0, 4), 48 + 1024 * i + 3 * HS)
        a("v_mov_b32_dpp v%d, v%d wave_shr:1 row_mask:0xf bank_mask:0xf bound_ctrl:0", M0, P2)
        a("v_mov_b32_dpp v%d, v%d wave_shr:1 row_mask:0xf bank_mask:0xf bound_ctrl:0", M1, P3)
        if i:
            a("v_readlane_b32 s64, v%d, 63", P2 - 6)
            a("v_readlane_b32 s65, v%d, 63", P3 - 6)
            a("v_writelane_b32 v%d, s64, 0", M0)
            a("v_writelane_b32 v%d, s65, 0", M1)
    for i in range(4):
        M0, M1, P0, P1, P2, P3 = [HP + 6 * i + x for x in range(6)]
        T = 160 + 12 * i
        base = 48 + 1024 * i
        for n, (hi, lo) in enumerate([(M1, M0), (P0, M1), (P1, P0), (P2, P1)]):
            a("v_alignbit_b32 v%d, v%d, v%d, 16", T + n, hi, lo)
        a("ds_write_b128 v%d, %s offset:%d", VCK, vr(T, 4), base + 0 * HS)
        for n, src in enumerate([M1, P0, P1, P2]):
            a("v_mov_b32 v%d, v%d", T + 4 + n, src)
        a("ds_write_b128 v%d, %s offset:%d", VCK, vr(T + 4, 4), base + 1 * HS)
        for n, (hi, lo) in enumerate([(P0, M1), (P1, P0), (P2, P1), (P3, P2)]):
            a("v_alignbit_b32 v%d, v%d, v%d, 16", T + 8 + n, hi, lo)
        a("ds_write_b128 v%d, %s offset:%d", VCK, vr(T + 8, 4), base + 2 * HS)


def phase_conv(a, shadow):
    for i in range(4):
        a("buffer_load_dwordx4 %s, v%d, %s, s83 offen sc1", vr(64 + 4 * i, 4), 8 + i, WS)
    srd(a, R3, PWD, 0, F * D * 2)
    AB = [32, 64]
    BB = [96, 128]
    ACC, UE, UF = 160, 192, 208
    rdA = lambda kp, t: "ds_read_b128 %s, v%d offset:%d" % (vr(AB[kp & 1] + 4 * t, 4), VA, 512 * t + 64 * kp)
    rdB = lambda kp, c: "ds_read_b128 %s, v%d offset:%d" % (vr(BB[kp & 1] + 4 * c, 4), VB, UOFF + 3584 - 512 * c + 64 * kp)
    for t in range(8):
        a(rdA(0, t))
    for i in range(4):
        a("s_waitcnt vmcnt(%d)", 3 - i)
        a("ds_write_b128 v%d, %s offset:%d", VCK, vr(64 + 4 * i, 4), UOFF + US + 1024 * i)
        a("ds_write_b64 v%d, %s offset:%d", VCK, vr(64 + 4 * i, 2), UOFF - 8 + 1024 * i)
        a("ds_write_b64 v%d, %s offset:%d", VCK, vr(66 + 4 * i, 2), UOFF + 1024 * i)
    stamp(a, 5)
    for c in range(7, -1, -1):
        a(rdB(0, c))
    bg = {geti("wcat", 59): "buffer_load_dwordx4 %s, v%d, %s, 0 offen %s" % (vr(VWD, 4), VT1, q4(R3), NT)}
    if not XEARLY:
        srd(a, R6, PQ, 0, S * D * 2)
        for i, l in enumerate(x_loads(R6)):
            bg[geti("xat", 21) + 8 * i] = l
    if geti("pf", 1):
        bg[geti("pfat", 75)] = "buffer_load_dword v30, v3, %s, s88 offen" % q4(R1)
    shadow = list(shadow)
    for kp in range(8):
        buf = kp & 1
        fill = ([rdA(kp + 1, 0)] + [rdB(kp + 1, c) for c in range(8)] + [rdA(kp + 1, t) for t in range(1, 8)]) if kp < 7 else []
        extra = []
        if kp == 7:
            fill = ["ds_read_b64 %s, v%d offset:%d" % (vr(UE + 2 * c, 2), VUR, UOFF + US + 3584 - 512 * c) for c in range(8)]
            for c in range(8):
                extra.append("v_and_b32 v%d, 0xffff0000, v%d" % (UF + 4 * c + 0, UE + 2 * c + 1))
                extra.append("v_lshlrev_b32 v%d, 16, v%d" % (UF + 4 * c + 1, UE + 2 * c + 1))
                extra.append("v_and_b32 v%d, 0xffff0000, v%d" % (UF + 4 * c + 2, UE + 2 * c))
                extra.append("v_lshlrev_b32 v%d, 16, v%d" % (UF + 4 * c + 3, UE + 2 * c))
        if kp:
            a("s_waitcnt lgkmcnt(0)")
        n = 0
        waited = False
        for t in range(8):
            cs = range(7 - t, -1, -1) if t % 2 == 0 else range(8 - t)
            for c in cs:
                if kp == 0 and t == 0:
                    a("s_waitcnt lgkmcnt(%d)", c)
                acc = vr(ACC + 4 * (t + c), 4)
                src = "0" if (kp == 0 and t == 0) else acc
                a("v_mfma_f32_16x16x32_bf16 %s, %s, %s, %s", acc, vr(AB[buf] + 4 * t, 4), vr(BB[buf] + 4 * c, 4), src)
                n += 1
                room = 2
                first = kp == 0 and t == 0
                if fill and not first and (n % 2 == 0 or kp == 7 or (kp == 0 and n < 18)):
                    a(fill.pop(0))
                    room -= 1
                elif extra and not fill and n >= 18:
                    if not waited:
                        a("s_waitcnt lgkmcnt(0)")
                        waited = True
                    a(extra.pop(0))
                    a(extra.pop(0))
                    room = 0
                gi = 36 * kp + n
                if gi in bg:
                    a(bg[gi])
                    room = 0
                while room and shadow and kp < 7:
                    a(shadow.pop(0))
                    room -= 1
        assert not fill and not extra
    assert not shadow, len(shadow)
    stamp(a, 6)
    for c in range(8):
        for p in range(2):
            r = ACC + 4 * c + 2 * p
            a("v_pk_fma_f32 %s, %s, s[84:85], %s", vr(r, 2), vr(UF + 4 * c + 2 * p, 2), vr(r, 2))
        a("v_cvt_pk_bf16_f32 v%d, v%d, v%d", 32 + 2 * c, ACC + 4 * c, ACC + 4 * c + 1)
        a("v_cvt_pk_bf16_f32 v%d, v%d, v%d", 33 + 2 * c, ACC + 4 * c + 2, ACC + 4 * c + 3)
        a("ds_write_b64 v%d, %s offset:%d", VYW, vr(32 + 2 * c, 2), 512 * c)
    a("s_waitcnt lgkmcnt(0)")
    a("s_barrier")
    Y, O = 160, 176
    for n in range(4):
        for c in range(4):
            a("ds_read_b32 v%d, v%d offset:%d", Y + 4 * n + c, VT0 if c < 2 else VT2, (c & 1) * CH + 256 * n)
    for n in range(4):
        a("s_mov_b32 s64, 0x%x", WS_YB + 16 * 4 * BLK * n)
        a("s_waitcnt lgkmcnt(%d)", 4 * (3 - n))
        y = Y + 4 * n
        a("v_perm_b32 v%d, v%d, v%d, s20", O + 4 * n + 0, y + 1, y + 0)
        a("v_perm_b32 v%d, v%d, v%d, s20", O + 4 * n + 1, y + 3, y + 2)
        a("v_perm_b32 v%d, v%d, v%d, s21", O + 4 * n + 2, y + 1, y + 0)
        a("v_perm_b32 v%d, v%d, v%d, s21", O + 4 * n + 3, y + 3, y + 2)
        a("buffer_store_dwordx4 %s, v4, %s, s64 offen sc1", vr(O + 4 * n, 4), WS)
    stamp(a, 7)


XR, YR, XF, YF, LT, LX = 32, 48, 64, 96, 128, 144


def ln_stats(a, X, lds_off):
    T = LT
    a("v_and_b32 v16, 7, v0")
    a("v_lshlrev_b32 v16, 5, v16")
    a("v_add_u32 v16, %d, v16", L_ST + lds_off)
    a("s_lshl_b32 s64, %s, 3", WAVE)
    a("v_add_u32 v17, s64, v16")
    for c in range(4):
        a("v_pk_add_f32 %s, %s, %s", vr(T + 2 * c, 2), vr(X + 2 * c, 2), vr(X + 8 + 2 * c, 2))
        a("v_pk_mul_f32 %s, %s, %s", vr(T + 8 + 2 * c, 2), vr(X + 2 * c, 2), vr(X + 2 * c, 2))
    for g in (8, 16, 24):
        for c in range(4):
            x = vr(X + g + 2 * c, 2)
            if g > 8:
                a("v_pk_add_f32 %s, %s, %s", vr(T + 2 * c, 2), vr(T + 2 * c, 2), x)
            a("v_pk_fma_f32 %s, %s, %s, %s", vr(T + 8 + 2 * c, 2), x, x, vr(T + 8 + 2 * c, 2))
    for b in (T, T + 8):
        a("v_pk_add_f32 %s, %s, %s", vr(b, 2), vr(b, 2), vr(b + 2, 2))
        a("v_pk_add_f32 %s, %s, %s", vr(b + 4, 2), vr(b + 4, 2), vr(b + 6, 2))
    for b in (T, T + 8):
        a("v_pk_add_f32 %s, %s, %s", vr(b, 2), vr(b, 2), vr(b + 4, 2))
    a("v_add_f32 v12, v%d, v%d", T, T + 1)
    a("v_add_f32 v13, v%d, v%d", T + 8, T + 9)
    for r in (12, 13):
        a("v_add_f32_dpp v%d, v%d, v%d row_ror:8 row_mask:0xf bank_mask:0xf", r, r, r)
    for op in ("v_permlane16_swap_b32", "v_permlane32_swap_b32"):
        a("v_mov_b32 v14, v12")
        a("v_mov_b32 v15, v13")
        a("%s v12, v14", op)
        a("%s v13, v15", op)
        a("v_pk_add_f32 v[12:13], v[12:13], v[14:15]")
    a("ds_write_b64 v17, v[12:13]")
    a("s_waitcnt lgkmcnt(0)")
    a("s_barrier")
    a("ds_read_b128 %s, v16", vr(T, 4))
    a("ds_read_b128 %s, v16 offset:16", vr(T + 4, 4))
    a("s_waitcnt lgkmcnt(0)")
    a("v_pk_add_f32 %s, %s, %s", vr(T, 2), vr(T, 2), vr(T + 2, 2))
    a("v_pk_add_f32 %s, %s, %s", vr(T + 4, 2), vr(T + 4, 2), vr(T + 6, 2))
    a("v_pk_add_f32 v[12:13], %s, %s", vr(T, 2), vr(T + 4, 2))
    a("v_mul_f32 v12, 0x3a800000, v12")
    a("v_mul_f32 v13, 0x3a800000, v13")
    a("v_fma_f32 v13, -v12, v12, v13")
    a("v_max_f32 v13, 0, v13")
    a("v_cvt_pk_bf16_f32 v12, v12, v13")
    a("v_and_b32 v13, 0xffff0000, v12")
    a("v_lshlrev_b32 v12, 16, v12")
    a("v_add_f32 v13, 0x3727c5ac, v13")
    a("v_cvt_pk_bf16_f32 v13, v13, v13")
    a("v_lshlrev_b32 v13, 16, v13")
    a("v_sqrt_f32 v13, v13")
    a("v_cvt_pk_bf16_f32 v13, v13, v13")
    a("v_lshlrev_b32 v13, 16, v13")
    a("v_rcp_f32 v18, v13")
    a("v_rcp_f32 v19, v13")
    a("v_mul_f32_e64 v20, -v12, v18")
    a("v_mul_f32_e64 v21, -v12, v18")


def x_unpack(a):
    for i in range(16):
        a("v_accvgpr_read_b32 v%d, a%d", XR + i, XA + i)
    for i in range(16):
        unpack(a, XF + 2 * i, XR + i)


def ln_setup(a):
    a("v_and_b32 v12, 7, v0")
    a("v_lshrrev_b32 v13, 3, v0")
    a("s_cmp_eq_u32 %s, 3", WAVE)
    a("s_cselect_b32 s64, 4, %s", WAVE)
    a("s_add_u32 s64, s64, 32")
    a("v_mov_b32 v15, s64")
    a("v_and_b32 v14, 7, v13")
    a("v_cmp_eq_u32 vcc, 3, v14")
    a("v_cndmask_b32 v14, v13, v15, vcc")
    a("v_lshlrev_b32 v14, 7, v14")
    a("v_lshl_add_u32 v14, v12, 3, v14")
    a("s_mul_i32 s64, %s, %d", RG, 4 * BLK)
    a("v_add_u32 v%d, s64, v14", VYO)
    a("s_bfe_u32 s68, %s, 0x20001", RG)
    a("s_and_b32 s93, %s, 1", RG)
    a("s_lshl_b32 s64, s68, 10")
    a("s_lshl_b32 s94, s93, 7")
    a("s_add_u32 s64, s64, s94")
    a("s_cmp_eq_u32 s68, 3")
    a("s_cselect_b32 s68, 4, s68")
    a("s_lshl_b32 s68, s68, 7")
    a("s_add_u32 s68, s68, 4096")
    a("s_add_u32 s94, s64, 256")
    a("s_cmp_eq_u32 s93, 1")
    a("s_cselect_b32 s68, s68, s94")
    a("v_and_b32 v14, 3, v13")
    a("v_lshlrev_b32 v15, 8, v14")
    a("v_add_u32 v15, s64, v15")
    a("v_cmp_eq_u32 vcc, 1, v14")
    a("v_mov_b32 v14, s68")
    a("v_cndmask_b32 v15, v15, v14, vcc")
    a("v_lshl_add_u32 v15, v12, 4, v15")
    a("v_lshrrev_b32 v14, 2, v13")
    a("v_mul_u32_u24 v14, %d, v14", BLK)
    a("v_add_u32 v15, v15, v14")
    a("s_lshr_b32 s64, %s, 3", RG)
    a("s_mul_i32 s64, s64, %d", 32 * BLK)
    a("v_add_u32 v%d, s64, v15", VXT)


def phase_ln(a, after_loads, n_after):
    for i in range(4):
        a("s_mov_b32 s64, 0x%x", WS_YB + BLK * i)
        for hf in range(2):
            a("buffer_load_dwordx2 %s, v%d, %s, s64 offen offset:%d sc1", vr(YR + 4 * i + 2 * hf, 2), VYO, WS, 64 * hf)
    after_loads()
    for i in range(4):
        a("s_waitcnt vmcnt(%d)", 2 * (3 - i) + n_after)
        ks = range(4 * i, 4 * i + 4)
        for k in ks:
            unpack(a, YF + 2 * k, YR + k)
        for k in ks:
            a("v_pk_fma_f32 %s, %s, %s, %s", vr(YF + 2 * k, 2), vr(LX + 2 * k, 2), vr(YF + 2 * k, 2), vr(XF + 2 * k, 2))
        for k in ks:
            a("v_cvt_pk_bf16_f32 v%d, v%d, v%d", XR + k, YF + 2 * k, YF + 2 * k + 1)
        for k in ks:
            unpack(a, XF + 2 * k, XR + k)
    stamp(a, 10)
    ln_stats(a, XF, 256)
    for i in range(4):
        ks = range(4 * i, 4 * i + 4)
        a("s_mov_b32 s64, 0x%x", WS_XT + 8 * BLK * i)
        for k in ks:
            a("v_pk_fma_f32 %s, %s, v[18:19], v[20:21]", vr(XF + 2 * k, 2), vr(XF + 2 * k, 2))
        for k in ks:
            a("v_cvt_pk_bf16_f32 v%d, v%d, v%d", YR + k, XF + 2 * k, XF + 2 * k + 1)
        a("buffer_store_dwordx4 %s, v%d, %s, s64 offen sc1", vr(YR + 4 * i, 4), VXT, WS)
    stamp(a, 11)


def place_loads(gaps, items, slots):
    place = {}
    assert len(items) <= len(slots), (len(items), len(slots))
    for i, it in enumerate(items):
        sl = slots[(i * len(slots)) // len(items)]
        assert sl not in place
        place[sl] = it
    prev = -1
    for sl in sorted(place):
        for k, pi in enumerate(reversed(place[sl][0])):
            g = min(max(prev + 1, sl - 1 - k, 0), sl)
            gaps[g].insert(0, pi)
        prev = sl
    return place


def emit_items(a, items, vm=None):
    for it in items:
        for p in it[0]:
            a(p)
        a(it[1])
        if vm:
            vm.issue(it[2])


class G1:
    NST = 32
    WF, XF, ACC = 0, 32, 32

    def __init__(self, a):
        self.a = a
        self.vm = VM()
        self.waits = []

    def setup(self, a):
        a("s_lshr_b32 s71, %s, 3", IDX)
        a("s_lshl_b32 s64, %s, 2", XCD)
        a("s_add_u32 s71, s71, s64")
        a("s_and_b32 s72, %s, 7", IDX)
        a("v_mul_u32_u24 v26, 4682, v1")
        a("v_lshrrev_b32 v26, 16, v26")
        a("v_mul_u32_u24 v27, 14, v26")
        a("v_sub_u32 v27, v1, v27")
        a("s_lshl_b32 s64, %s, 3", WAVE)
        a("v_add_u32 v26, s64, v26")
        a("v_mul_u32_u24 v26, 7168, v26")
        a("v_lshl_add_u32 v26, v27, 4, v26")
        a("s_mul_i32 s64, s71, 224")
        a("v_add_u32 v26, s64, v26")
        a("v_mov_b32 v27, 0x7fff0000")
        a("v_cmp_le_u32 vcc, 56, v1")
        a("v_cndmask_b32 v26, v26, v27, vcc")
        a("v_add_u32 v27, %d, v26", 4 * 7168)
        a("s_mul_i32 s86, %s, %d", WAVE, 2 * G1_GP)
        a("s_mov_b32 s87, 0")
        srd(a, R4, PWG, 0, D * F * 2)
        srd(a, R5, PWU, 0, D * F * 2)
        a("s_lshl_b32 s73, s72, 2")
        a("s_add_u32 s73, s73, %s", WAVE)
        a("s_mul_i32 s69, s73, %d", 32 * BLK)
        a("s_add_u32 s69, s69, 0x%x", WS_XT)
        a("v_lshrrev_b32 v5, 4, v1")
        a("v_mul_u32_u24 v5, %d, v5", 2 * G1_GP)
        a("v_bfe_u32 v6, v1, 2, 2")
        a("v_mul_u32_u24 v6, 224, v6")
        a("v_add_u32 v5, v5, v6")
        a("v_and_b32 v6, 3, v1")
        a("v_lshl_add_u32 v5, v6, 3, v5")
        a("s_and_b32 s78, s71, 1")
        a("s_xor_b32 s79, s78, 1")
        a("s_mul_i32 s79, s79, 192")
        a("v_add_u32 v6, s79, v5")
        a("s_lshl_b32 s79, s78, 5")
        a("v_add_u32 v5, s79, v5")
        a("s_mov_b32 s70, %d", 4 * G1_STAGE)
        a("s_mul_i32 s77, s73, %d", HH_BLK)
        a("s_add_u32 s77, s77, 0x%x", WS_HH)
        a("s_mul_i32 s76, s71, %d", BLK)
        a("s_add_u32 s76, s76, s77")
        a("s_add_u32 s75, s76, %d", 32 * BLK)
        a("s_add_u32 s74, s76, %d", 64 * BLK)
        a("s_lshl_b32 s79, s71, 12")
        a("s_add_u32 s77, s77, s79")
        a("s_add_u32 s77, s77, %d", HH_SPLIT + 512)
        a("v_lshlrev_b32 v7, 3, v1")
        a("s_mov_b32 s65, s86")
        a("s_lshl_b32 s67, s86, 1")
        a("s_add_u32 s67, s67, %d", 4 * G1_STAGE)
        a("s_add_u32 s78, s88, %d", 512 * 7168)
        a("s_lshl_b32 s80, %s, 2", IDX)
        a("s_add_u32 s80, s80, %s", WAVE)
        a("s_mul_i32 s80, s80, %d", 8 * 7168)
        a("s_mul_i32 s79, %s, 896", XCD)
        a("s_add_u32 s80, s80, s79")
        a("s_lshr_b32 s79, %s, 3", IDX)
        a("s_lshl_b32 s79, s79, 2")
        a("s_mov_b32 s66, 0")
        a("s_mov_b32 s82, %d", geti("tgap", 12))

    def w_items(self, n, inloop=False):
        it = []
        for k in range(4):
            off = (n & 3) * G1_STAGE + (k >> 1) * G1_UP + (k & 1) * G1_GP
            pre = []
            if k == 0 and n > 0:
                pre.append("s_add_u32 s87, s87, %d" % (32 * 7168))
            if inloop:
                pre.append("s_add_u32 m0, s65, %d" % off)
            else:
                pre.append("s_add_u32 m0, s86, %d" % (off + ((n >> 2) & 1) * 4 * G1_STAGE))
            ld = "buffer_load_dwordx4 %s, %s, s87 offen lds" % ("v27" if k & 1 else "v26", q4(R5) if k >> 1 else q4(R4))
            it.append((pre, ld, ("W", n)))
        return it

    def x_items(self, n, inloop=False):
        it = []
        for j in range(4):
            pre = ["s_add_u32 s69, s69, %d" % BLK] if (j == 0 and n > 0) else []
            ld = "buffer_load_dwordx4 %s, v%d, %s, s69 offen sc1" % (ar(self.XF + 16 * (n & 3) + 4 * j, 4), 8 + j, WS)
            it.append((pre, ld, ("X", n)))
        return it

    def issue(self, lst):
        for k, n in lst:
            emit_items(self.a, self.w_items(n) if k == "W" else self.x_items(n), self.vm)

    def fb(self, tau, n):
        return self.WF + 4 * ((14 * (tau & 3) + n) % 8)

    def rd(self, tau, n, hh):
        p, up = n >> 1, n & 1
        off = (tau & 3) * G1_STAGE + up * G1_UP + hh * G1_GP + (0 if p == 6 else 32 * p)
        return "ds_read_b64_tr_b16 %s, %s offset:%d" % (ar(self.fb(tau, n) + 2 * hh, 2), "v6" if p == 6 else "v5", off)

    def stage(self, e, tau, lst, inloop, extra=()):
        last = tau == self.NST - 1
        gaps = [[] for _ in range(56)]
        for n in range(14):
            if n < 7:
                t2, n2 = tau, n + 7
            elif not last:
                t2, n2 = tau + 1, n - 7
            else:
                continue
            gaps[4 * n].append(self.rd(t2, n2, 0))
            gaps[4 * n + 1].append(self.rd(t2, n2, 1))
        if (tau & 3) == 3 and not last:
            gaps[4 * 6 + 2] += ["v_add_u32 v5, s70, v5", "v_add_u32 v6, s70, v6"]
            gaps[4 * 7 + 2] += ["s_sub_u32 s70, 0, s70"]
        for n in range(1, 13, 2):
            hi = min(n + 7, 13) if last else n + 7
            gaps[4 * n + 3].append("s_waitcnt lgkmcnt(%d)" % (2 * (hi - (n + 2))))
        g = [self.w_items(n, inloop) if k == "W" else self.x_items(n, inloop) for k, n in lst]
        items = [x for pair in zip(*g) for x in pair] if len(g) == 2 else [x for y in g for x in y]
        if geti("tch", 1) and (tau & 3) == 1 and tau < 28:
            items.append((["s_cmp_eq_u32 s66, s79\ns_cselect_b32 s81, s78, 0x40000000"],
                          "buffer_load_dword v30, v3, %s, s81 offen" % q4(R1), ("T", tau)))
        items += list(extra)
        slots = sorted([4 * n + 2 for n in range(14)] + [4 * n + 3 for n in range(0, 14, 2)])
        if len(items) <= 12:
            slots = [4 * n + 2 for n in range(1, 14)]
        place = place_loads(gaps, items, slots) if items else {}
        n_ = self.vm.need([("X", tau)] + ([("W", tau + 1)] if not last else []))
        self.waits.append(n_)
        e("s_waitcnt vmcnt(%d) lgkmcnt(10)" % n_)
        if not last:
            e("s_barrier")
        for i in range(56):
            n, c = i >> 2, i & 3
            j = c if n % 2 == 0 else 3 - c
            acc = vr(self.ACC + 4 * (4 * n + j), 4)
            e("v_mfma_f32_16x16x32_bf16 %s, %s, %s, %s" % (
                acc, ar(self.fb(tau, n), 4), ar(self.XF + 16 * (tau & 3) + 4 * j, 4), "0" if tau == 0 else acc))
            for f in gaps[i]:
                e(f)
            if i in place:
                e(place[i][1])
                self.vm.issue(place[i][2])

    def first_reads(self):
        for n in range(7):
            self.a(self.rd(0, n, 0))
            self.a(self.rd(0, n, 1))

    def main(self, first, extra0, g2):
        a = self.a
        vm = self.vm
        stamp(a, 14)
        for tau in range(4):
            self.stage(a, tau, first[tau], False, extra0 if tau == 3 else ())

        def post_touch():
            a("s_cmp_eq_u32 s66, s79")
            a("s_cselect_b32 s%d, s%d, s%d", R1, PWD, R1)
            a("s_cselect_b32 s%d, s%d, s%d", R1 + 1, PWD + 1, R1 + 1)
            a("s_cselect_b32 s78, s80, s78")
            a("s_cselect_b32 s81, s82, 0")
            a("s_cselect_b32 s82, 64, s82")
            a("s_add_u32 s79, s79, s81")

        post_touch()
        lo, hi = 4, 24
        a("s_mov_b32 s66, %d", lo)
        a.label("L_g1_loop")
        w0 = len(self.waits)
        sv = list(vm.q)
        for tau in range(lo, hi):
            self.stage(Null(), tau, [("W", tau + 4), ("X", tau + 3)], True)
        steady = self.waits[w0:]
        body = [min(steady[u::4]) for u in range(4)]
        end_q = list(vm.q)
        vm.q = sv
        real_need = vm.need
        for tau in range(lo, lo + 4):
            vm.need = lambda tags, v=body[(tau - lo) & 3]: v
            self.stage(a, tau, [("W", tau + 4), ("X", tau + 3)], True)
        vm.need = real_need
        vm.q = end_q
        a("s_sub_u32 s65, s67, s65")
        post_touch()
        a("s_add_u32 s66, s66, 4")
        a("s_cmp_lt_u32 s66, %d", hi)
        a("s_cbranch_scc1 L_g1_loop")
        if geti("ct", 1):
            code_touch(a, R3, 30, "L_g1_tail", "b")
        it = [x for n in (10, 11, 12, 13, 0, 1, 2, 3, 9, 14, 15, 16, 17) for x in g2.w_items(n)]
        for tau in range(24, 28):
            self.stage(a, tau, [("W", tau + 4), ("X", tau + 3)], False, it[4 * (tau - 24):4 * (tau - 23)])
        a.label("L_g1_tail")
        self.stage(a, 28, [("X", 31)], False, it[16:22])
        self.stage(a, 29, [], False, it[22:32])
        self.stage(a, 30, [], False, it[32:42])
        self.stage(a, 31, [], False, it[42:52])
        stamp(a, 15)

    def epilogue(self, g2):
        a = self.a
        a("s_barrier")
        pend = [x for n in (4, 5, 6, 7, 8) for x in g2.w_items(n)]
        pend += [x for n in range(18, 18 + g2.NVP) for x in g2.w_items(n)]
        c0 = -2.0 * 0.7978845608028654 * 1.4426950408889634
        c1 = c0 * 0.044715
        a("s_mov_b32 s82, 0x%x", f2u(c1))
        a("s_mov_b32 s83, 0x%x", f2u(c1))
        a("s_mov_b32 s84, 1.0")
        a("s_mov_b32 s85, 1.0")
        a("v_mov_b32 v12, 0x%x", f2u(c0))
        a("v_mov_b32 v13, 0x%x", f2u(c0))
        a("s_lshr_b32 s68, s92, 1")
        a("s_and_b32 s64, s92, 1")
        a("s_lshl_b32 s64, s64, 4")
        a("s_add_u32 s64, s64, s91")
        early_setup(a, 4, "s68", "s64", 78)
        a("s_add_u32 s79, s78, 65536")
        acc = lambda n, j: self.ACC + 4 * (4 * n + j)
        T = 14
        since = [0]

        def more():
            k = geti("epl", 2)
            emit_items(a, pend[:k])
            since[0] += len(pend[:k])
            del pend[:k]

        def act(gs, us):
            for p in range(4):
                a("v_pk_mul_f32 %s, %s, %s", vr(T + 2 * p, 2), vr(gs[p], 2), vr(gs[p], 2))
            for p in range(4):
                a("v_pk_fma_f32 %s, %s, s[82:83], v[12:13]", vr(T + 2 * p, 2), vr(T + 2 * p, 2))
            for p in range(4):
                a("v_pk_mul_f32 %s, %s, %s", vr(T + 2 * p, 2), vr(T + 2 * p, 2), vr(gs[p], 2))
            for e in range(8):
                a("v_exp_f32 v%d, v%d", T + e, T + e)
            for p in range(4):
                a("v_pk_mul_f32 %s, %s, %s", vr(gs[p], 2), vr(gs[p], 2), vr(us[p], 2))
            for p in range(4):
                a("v_pk_add_f32 %s, %s, s[84:85]", vr(T + 2 * p, 2), vr(T + 2 * p, 2))
            for e in range(8):
                a("v_rcp_f32 v%d, v%d", T + e, T + e)
            for p in range(4):
                a("v_pk_mul_f32 %s, %s, %s", vr(gs[p], 2), vr(gs[p], 2), vr(T + 2 * p, 2))
            for p in range(4):
                a("v_cvt_pk_bf16_f32 v%d, v%d, v%d", gs[0] + p, gs[p], gs[p] + 1)

        for jj in range(2):
            g0, u0, g1, u1 = acc(12, 2 * jj), acc(13, 2 * jj), acc(12, 2 * jj + 1), acc(13, 2 * jj + 1)
            act([g0, g0 + 2, g1, g1 + 2], [u0, u0 + 2, u1, u1 + 2])
            a("buffer_store_dwordx2 %s, v7, %s, s77 offen offset:%d sc1", vr(g0, 2), WS, 2048 * jj)
            a("buffer_store_dwordx2 %s, v7, %s, s77 offen offset:%d sc1", vr(g0 + 2, 2), WS, 2048 * jj + 1024)
            more()
        for m in (2, 1, 0):
            for j in range(4):
                g0, u0, g1, u1 = acc(4 * m, j), acc(4 * m + 1, j), acc(4 * m + 2, j), acc(4 * m + 3, j)
                act([g0, g0 + 2, g1, g1 + 2], [u0, u0 + 2, u1, u1 + 2])
                if 4 * (2 - m) + j == geti("sigb", 7):
                    signal(a, 4, "s72", "s71", since[0])
                a("buffer_store_dwordx4 %s, v%d, %s, s%d offen sc1", vr(g0, 4), 8 + j, WS, 74 + m)
                since[0] = 0 if m == 2 else since[0] + 1
                more()
                if m == 0 and j == geti("epj", 1):
                    a(early_load(78))
                    since[0] = 0
        since[0] += len(pend)
        emit_items(a, pend)
        self.keep = since[0]
        stamp(a, 16)


class G2:
    NST = 28
    WF, XF, ACC, HR = 0, 32, 32, 176
    NB, DIST, NX = 8, 5, 6
    NVP = geti('nvp', 2)

    def __init__(self, a):
        self.a = a
        self.vm = VM()

    def setup_w(self, a):
        a("s_lshr_b32 s91, %s, 2", IDX)
        a("s_cmp_eq_u32 s91, 3")
        a("s_cselect_b32 s93, 9, 11")
        a("s_and_b32 s94, %s, 1", XCD)
        a("s_lshl_b32 s92, s94, 3")
        a("s_add_u32 s91, s91, s92")
        a("s_lshl_b32 s92, s91, 7")
        a("s_lshl_b32 s94, s94, 8")
        a("s_cmp_eq_u32 s93, 9")
        a("s_cselect_b32 s94, s94, s92")
        a("v_lshrrev_b32 v14, 3, v1")
        a("v_bfe_u32 v15, v1, 4, 2")
        a("v_lshlrev_b32 v15, 1, v15")
        a("v_and_b32 v16, 7, v1")
        a("v_xor_b32 v15, v15, v16")
        a("v_lshlrev_b32 v15, 4, v15")
        a("v_add_u32 v15, s94, v15")
        for i in range(4):
            a("v_add_u32 v%d, %d, v14", 22 + i, 8 * i)
            a("v_lshlrev_b32 v%d, s93, v%d", 22 + i, 22 + i)
            a("v_add_u32 v%d, v%d, v15", 22 + i, 22 + i)
        a("v_lshlrev_b32 v14, 2, v1")
        a("v_add_u32 v14, %s, v14", WAVE)
        a("v_subrev_u32 v15, 16, v14")
        a("v_cmp_gt_u32 vcc, 32, v14")
        a("v_cndmask_b32 v15, v15, v14, vcc")
        a("v_bfe_u32 v16, v15, 1, 4")
        a("v_mul_u32_u24 v16, 7, v16")
        a("v_and_b32 v17, 1, v15")
        a("v_lshl_add_u32 v16, v17, 2, v16")
        a("v_lshrrev_b32 v15, 5, v15")
        a("v_sub_u32 v16, v16, v15")
        a("v_add_u32 v16, 2, v16")
        a("v_subrev_u32 v14, 32, v14")
        a("v_cmp_gt_u32 vcc, 16, v14")
        a("v_mul_u32_u24 v14, 7, v14")
        a("v_add_u32 v14, 3, v14")
        a("v_cndmask_b32 v2, v16, v14, vcc")
        a("s_add_u32 s92, s93, 5")
        a("v_lshlrev_b32 v2, s92, v2")
        a("s_lshl_b32 s89, %s, 12", WAVE)
        a("s_add_u32 s94, s%d, 0x%x\ns_addc_u32 s95, s%d, 0", PWS, WS_WC, PWS + 1)
        a("s_cmp_eq_u32 s93, 9")
        a("s_cselect_b32 s%d, s94, s%d", R0, PWD)
        a("s_cselect_b32 s%d, s95, s%d", R0 + 1, PWD + 1)
        a("s_mov_b32 s94, 0x%x", F * D * 2)
        a("s_cselect_b32 s%d, 0x%x, s94", R0 + 2, WC_SZ)
        a("s_mov_b32 s%d, 0x20000", R0 + 3)
        a("s_lshr_b32 s92, %s, 1", XCD)
        a("s_lshl_b32 s92, s92, 2")
        a("s_and_b32 s94, %s, 3", IDX)
        a("s_add_u32 s92, s92, s94")
        a("s_and_b32 s93, %s, 1", WAVE)
        a("s_lshl_b32 s94, s92, 1")
        a("s_add_u32 s94, s94, s93")
        a("s_mul_i32 s31, s94, %d", HH_BLK)
        a("s_add_u32 s31, s31, 0x%x", WS_HH)
        a("s_lshr_b32 s93, %s, 1", WAVE)
        a("s_mul_i32 s30, s93, %d", 2 * BLK)
        a("s_add_u32 s30, s30, s31")
        a("s_lshl_b32 s93, s93, 14")
        a("s_add_u32 s31, s31, s93")
        a("s_add_u32 s31, s31, %d", HH_SPLIT + 512)

    def setup2(self):
        a = self.a
        a("s_lshr_b32 s64, %s, 1", WAVE)
        a("s_lshl_b32 s64, s64, 6")
        a("v_lshrrev_b32 v3, 2, v1")
        a("v_add_u32 v4, s64, v3")
        a("v_lshlrev_b32 v4, 7, v4")
        a("v_and_b32 v5, 3, v1")
        a("v_lshl_add_u32 v4, v5, 3, v4")
        a("v_bfe_u32 v3, v1, 3, 2")
        a("v_lshlrev_b32 v3, 5, v3")
        a("v_xor_b32 v3, s64, v3")
        for t in range(4):
            a("v_xor_b32 v5, %d, v3", 32 * t)
            a("v_add_u32 v%d, v4, v5", 16 + t)

    def setup3(self, a):
        srd(a, R6, POUT, 0, S * D * 2)
        a("v_lshlrev_b32 v20, 4, v1")
        a("v_add_u32 v20, s89, v20")
        a("s_and_b32 s65, %s, 1", WAVE)
        a("s_lshl_b32 s66, s92, 1")
        a("s_add_u32 s65, s65, s66")
        a("s_lshl_b32 s65, s65, 6")
        a("v_and_b32 v6, 15, v1")
        a("v_add_u32 v6, s65, v6")
        a("v_lshlrev_b32 v6, 11, v6")
        a("s_lshl_b32 s65, s91, 7")
        a("s_add_u32 s65, s65, s64")
        a("v_add_u32 v6, s65, v6")
        a("v_bfe_u32 v5, v1, 4, 1")
        a("v_lshl_add_u32 v6, v5, 5, v6")
        a("v_lshrrev_b32 v5, 5, v1")
        a("v_lshl_add_u32 v6, v5, 4, v6")
        a("v_add_u32 v21, 0x%x, v6", WS_H)
        a("s_mov_b32 s74, 32768")
        a("s_mov_b32 s75, 65536")
        a("s_mov_b32 s76, 98304")
        a("v_lshlrev_b32 v5, 4, v1")
        a("s_lshl_b32 s65, %s, 13", WAVE)
        a("v_add_u32 v3, s65, v5")
        a("s_xor_b32 s65, s65, 0x4000")
        a("v_add_u32 v4, s65, v5")

    def park(self, n):
        if 10 <= n < 18:
            return ("a", 128 + 16 * (n - 10))
        if 18 <= n < 18 + self.NVP:
            return ("v", 240 - 16 * (n - 18))
        return None

    def w_items(self, n):
        it = []
        for k in range(4):
            pre = []
            if k == 0:
                pre.append("v_readlane_b32 s95, v2, %d" % n)
                pre.append("s_mov_b32 s90, s95")
            pk = self.park(n)
            if pk is None:
                pre.append("s_add_u32 m0, s89, %d" % ((n % 10) * G2_STAGE + k * 1024))
                ld = "buffer_load_dwordx4 v%d, %s, s90 offen sc1 lds" % (22 + k, q4(R0))
            else:
                ld = "buffer_load_dwordx4 %s[%d:%d], v%d, %s, s90 offen sc1" % (pk[0], pk[1] + 4 * k, pk[1] + 4 * k + 3, 22 + k, q4(R0))
            it.append((pre, ld, ("V", n)))
        return it

    def x_items(self, i):
        it = []
        n, q = i >> 1, i & 1
        r = self.XF + 16 * (i % self.NX)
        if not 8 <= n < 12:
            for j in range(4):
                pre = ["s_add_u32 s69, s30, %d" % ((4 * (n if n < 8 else n - 4) + q) * BLK)] if j == 0 else []
                ld = "buffer_load_dwordx4 %s, v%d, %s, s69 offen sc1" % (ar(r + 4 * j, 4), 8 + j, WS)
                it.append((pre, ld, ("X", i)))
        else:
            for h in range(2):
                for j in range(4):
                    pre = ["s_add_u32 s69, s31, %d" % ((4 * (n - 8) + q) * 8192 + 4096 * h)] if j == 0 else []
                    ld = "buffer_load_dwordx2 %s, v7, %s, s69 offen offset:%d sc1" % (ar(r + 4 * j + 2 * h, 2), WS, 1024 * j)
                    it.append((pre, ld, ("X", i)))
        return it

    def fb(self, f):
        return self.WF + 4 * (f % self.NB)

    def rd(self, f):
        i, t = f >> 2, f & 3
        slot = (i >> 1) % 10
        out = []
        base = (slot >> 2) * 65536
        if base != self.rbase[t]:
            out.append("v_add_u32 v%d, 0x%x, v%d" % (16 + t, (base - self.rbase[t]) & 0xffffffff, 16 + t))
            self.rbase[t] = base
        rs = ["ds_read_b64_tr_b16 %s, v%d offset:%d" % (
            ar(self.fb(f) + 2 * hh, 2), 16 + t, (slot & 3) * G2_STAGE + (32 * (i & 1) + 16 * hh) * 128) for hh in range(2)]
        return out, rs

    def first_reads(self):
        self.rbase = [0] * 4
        self.wbase = 0
        self.lq = []
        for f in range(self.DIST):
            for r in self.rd(f)[1]:
                self.a(r)
                self.lq.append(f)

    def lwait(self, f):
        last = max(k for k, x in enumerate(self.lq) if x == f)
        n = len(self.lq) - 1 - last
        assert n <= 15
        return n

    def main(self):
        a = self.a
        for i in range(self.NX - 1):
            emit_items(a, self.x_items(i), self.vm)
        sh = Cap()
        self.setup3(sh)
        for l in sh.l:
            a(l)
        stamp(a, 19)
        NS = 2 * self.NST
        so = ["0", "s74", "s75", "s76"]
        for i in range(NS):
            gaps = [[] for _ in range(16)]
            lds = {}
            for t in range(4):
                f = 4 * i + t + self.DIST
                if f < 4 * NS:
                    mv, rs = self.rd(f)
                    gaps[4 * t] += mv
                    gaps[4 * t].append(rs[0])
                    gaps[4 * t + 1].append(rs[1])
                    lds[rs[0]] = lds[rs[1]] = f
            items = self.x_items(i + self.NX - 1) if i + self.NX - 1 < NS else []
            if i == NS - self.NX + 1:
                items = [([], "buffer_load_dwordx4 %s, v21, %s, %s offen sc1" % (vr(self.HR + 4 * j, 4), WS, so[j]),
                          ("H", j)) for j in range(4)]
            slots = [2, 6, 10, 14] if len(items) <= 4 else [2, 3, 6, 7, 10, 11, 14, 15]
            n = (i >> 1) + 6
            if 10 <= n < 28:
                pk = self.park(n)
                if pk:
                    slot = n % 10
                    base = (slot >> 2) * 65536
                    if base != self.wbase:
                        gaps[1].append("v_add_u32 v20, 0x%x, v20" % ((base - self.wbase) & 0xffffffff))
                        self.wbase = base
                    for kk in range(4):
                        k, hf = 2 * (i & 1) + (kk >> 1), kk & 1
                        r = pk[1] + 4 * k + 2 * hf
                        w = "ds_write_b64 v20, %s[%d:%d] offset:%d" % (pk[0], r, r + 1, (slot & 3) * G2_STAGE + 1024 * k + 8 * hf)
                        gaps[3 + 4 * kk].append(w)
                        lds[w] = -1
                else:
                    w = self.w_items(n)[2 * (i & 1):2 * (i & 1) + 2]
                    items = [items[0], items[1], w[0], items[2], items[3], w[1]]
                    slots = [2, 3, 7, 10, 11, 15]
            if len(items) == 8 and self.park(n):
                slots = [1, 2, 5, 6, 9, 10, 13, 14]
            if i == geti("p5at", 14):
                items = items + [([], early_load(79), ("P", 5))]
                slots = sorted(slots + [12])
            place = place_loads(gaps, items, slots) if items else {}
            bar = i % 8 == 0 and 8 <= i <= 48
            need = [("X", i)]
            if bar:
                need += [("V", m) for m in range(i // 2 + 1, i // 2 + 5) if ("V", m) in self.vm.q]
            if i in (16, 28, 44) and geti("g2st", 0):
                stamp(a, {16: 20, 28: 22, 44: 23}[i])
            if i == 17:
                early_check(a, 5, 79, self.vm.need([("P", 5)]))
                if geti("g2st", 0):
                    stamp(a, 21)
            a("s_waitcnt vmcnt(%d) lgkmcnt(%d)" % (self.vm.need(need), 0 if bar else self.lwait(4 * i + 1)))
            if bar or i == 1:
                a("s_barrier")
            if i == 1:
                flag_store(a, 5, "s72", "s71", 1)
            for g in range(16):
                t, c = g >> 2, g & 3
                j = c if t % 2 == 0 else 3 - c
                acc = vr(self.ACC + 4 * (4 * t + j), 4)
                if g == 8:
                    a("s_waitcnt lgkmcnt(%d)" % self.lwait(4 * i + 3))
                a("v_mfma_f32_16x16x32_bf16 %s, %s, %s, %s" % (
                    acc, ar(self.fb(4 * i + t), 4), ar(self.XF + 16 * (i % self.NX) + 4 * j, 4), "0" if i == 0 else acc))
                for f in gaps[g]:
                    a(f)
                    if f in lds:
                        self.lq.append(lds[f])
                if g in place:
                    a(place[g][1])
                    self.vm.issue(place[g][2])
        stamp(a, 24)
        ACC, HR = self.ACC, self.HR
        for i in range(8):
            a("ds_write_b128 v3, %s offset:%d", vr(ACC + 32 + 4 * i, 4), 1024 * i)
        HF = 112
        a("s_waitcnt vmcnt(0)")
        for i in range(16):
            unpack(a, HF + 2 * i, HR + i)
        a("s_waitcnt lgkmcnt(0)")
        a("s_barrier")
        R = 144
        for j in range(4):
            for t in range(2):
                i = 4 * t + j
                a("ds_read_b128 %s, v4 offset:%d", vr(R + 4 * i, 4), 1024 * i)
        for j in range(4):
            a("s_waitcnt lgkmcnt(%d)", 2 * (3 - j))
            t0, t1 = ACC + 4 * j, ACC + 16 + 4 * j
            for t, b in ((0, t0), (1, t1)):
                for p in range(2):
                    a("v_pk_add_f32 %s, %s, %s", vr(b + 2 * p, 2), vr(b + 2 * p, 2), vr(R + 4 * (4 * t + j) + 2 * p, 2))
            for r in range(4):
                a("v_permlane16_swap_b32 v%d, v%d", t0 + r, t1 + r)
            for t, b in ((0, t0), (1, t1)):
                for p in range(2):
                    a("v_pk_add_f32 %s, %s, %s", vr(b + 2 * p, 2), vr(b + 2 * p, 2), vr(HF + 8 * j + 4 * t + 2 * p, 2))
            a("v_cvt_pk_bf16_f32 v%d, v%d, v%d", t0, t0, t0 + 1)
            a("v_cvt_pk_bf16_f32 v%d, v%d, v%d", t0 + 1, t0 + 2, t0 + 3)
            a("v_cvt_pk_bf16_f32 v%d, v%d, v%d", t0 + 2, t1, t1 + 1)
            a("v_cvt_pk_bf16_f32 v%d, v%d, v%d", t0 + 3, t1 + 2, t1 + 3)
            a("buffer_store_dwordx4 %s, v6, %s, %s offen %s", vr(t0, 4), q4(R6), so[j], P.get("omod", ""))
        stamp(a, 25)


def gen():
    a = Asm()
    g, g2 = G1(a), G2(a)
    phase_pre(a)
    build_h(a)
    signal(a, 1, XCD, IDX)
    stamp(a, 3)
    if XEARLY:
        x_unpack(a)
        ln_stats(a, XF, 0)
    await_(a, 1, XCD, IDX)
    stamp(a, 4)
    sh = Cap()
    ln_setup(sh)
    g.setup(sh)
    g2.setup_w(sh)
    phase_conv(a, sh.l)
    a("s_waitcnt vmcnt(4)")
    a("buffer_store_dwordx4 %s, v%d, %s, 0 offen sc1", vr(VWD, 4), VWS, WS)
    x_unpack(a)
    lx = lambda: [a("v_pk_fma_f32 %s, %s, v[18:19], v[20:21]", vr(LX + 2 * i, 2), vr(XF + 2 * i, 2)) for i in range(16)]
    if XEARLY:
        lx()
    signal(a, 2, XCD, IDX)
    stamp(a, 8)
    if not XEARLY:
        ln_stats(a, XF, 0)
        lx()
    await_(a, 2, None)
    stamp(a, 9)
    phase_ln(a, lambda: g.issue([("W", 0)]), 4)
    g.issue([("W", 1), ("W", 2), ("W", 3)])
    for i in range(16):
        a("v_accvgpr_write_b32 a%d, v%d", HA + i, XR + i)
    a("v_add_u32 v4, 0x%x, v%d", WS_H, VHO)
    signal(a, 3, "s72", "s71", 12)
    stamp(a, 12)
    g.first_reads()
    await_(a, 3, "s72", "s71")
    stamp(a, 13)
    g.issue([("X", 0), ("X", 1)])
    hst = [([], "buffer_store_dwordx4 %s, v4, %s, 0 offen offset:%d sc1" % (ar(HA + 4 * i, 4), WS, 512 * i), ("S", i))
           for i in range(4)]
    first = [[("X", 2), ("W", 4), ("X", 3)], [("W", 5), ("X", 4)], [("W", 6), ("X", 5)], [("W", 7), ("X", 6)]]
    g.main(first, hst, g2)
    a("s_cmp_lg_u32 s2, 0")
    a("s_cbranch_scc1 L_noepoch")
    a("s_mov_b32 s64, 0x%x", WS_FL)
    a("s_mov_b64 exec, 1")
    a("buffer_store_dword v28, off, %s, s64 sc0 sc1", WS)
    a("s_mov_b64 exec, -1")
    a.label("L_noepoch")
    g.epilogue(g2)
    g2.setup2()
    g2.first_reads()
    early_check(a, 4, 78, g.keep)
    stamp(a, 18)
    g2.main()
    if STAMP:
        a("s_waitcnt vmcnt(0)")
        stamp(a, 31)
        srd(a, R0, PWS, WS_ST, MB)
        a("s_lshl_b32 s64, s2, 10")
        a("v_lshlrev_b32 v2, 2, v0")
        a("buffer_store_dword v31, v2, %s, s64 offen", q4(R0))
    a.label("L_end")
    a("s_endpgm")
    a.label("L_code_end")
    return a


def build(path):
    name = NAME + "_kernel"
    out = HEADER
    if geti("aslist", 0):
        out += "; @launch kernel=%s grid=(256,1,1) block=(256,1,1) lds=%d\n" % (name, LDS_ALL)
    else:
        out += "; @launch grid=(256,1,1) block=(256,1,1) lds=%d\n" % LDS_ALL
    out += '.amdgcn_target "amdgcn-amd-amdhsa--gfx950"\n'
    a = gen()
    code, desc, info = kernel_text(name, a)
    print("vgpr/agpr/sgpr", info, "insts", len(a.ins), file=sys.stderr)
    open(path, "w").write(out + code + desc)


if __name__ == "__main__":
    build(sys.argv[1] if len(sys.argv) > 1 else "cdna_kernels/" + NAME + ".s")
```

```python
import sys, os, struct
sys.path.insert(0, os.path.dirname(os.path.abspath(__file__)))
from asmlib import Asm, vr, sr, ar, kernel_text

S, D, F = 2048, 1024, 3584
MB = 1 << 20
WS_YB, WS_H, WS_XT, WS_WC, WS_FL, WS_HH, WS_UB, WS_END, WS_ST = 0, 6 * MB, 10 * MB, 20 * MB, 23 * MB, 24 * MB, 46 * MB, 52 * MB, 64 * MB
BLK = 5120
HH_SPLIT = 96 * BLK
HH_BLK = HH_SPLIT + 16 * 8192
WC_SZ = F * 512
STAMP = bool(int(os.environ.get("STAMP", "0")))
EXP = os.environ.get("EXP", "").split(",")
P = dict(kv.split("=") for kv in os.environ.get("P", "").split(",") if kv)
geti = lambda k, d: int(P.get(k, d))
f2u = lambda x: struct.unpack("<I", struct.pack("<f", x))[0]
HERE = os.path.dirname(os.path.abspath(__file__))
NAME = "sequential_preLN__ssm_conv_h3__glu_gated_geglu__prompt"
HEADER = open(os.path.join(HERE, "..", "cdna_kernels", NAME + ".s.ref")).read().split("; Override")[0]
POS = [0, 1, 2, 4]
PQ, PK, PV, PSH, PSK, PSD, PWG, PWU, PWD, POUT, PWS = 8, 10, 12, 14, 16, 18, 22, 24, 26, 28, 32
XCD, IDX, WAVE, TAG, RG = "s3", "s4", "s5", "s34", "s35"
R0, R1, RW, R3, R4, R5, R6 = 36, 40, 44, 48, 52, 56, 60
q4 = lambda r: "s[%d:%d]" % (r, r + 3)
WS = q4(RW)
NT = P.get("nt", "nt")
XA, HA = 192, 208

HS, US = 4160, 4576
UOFF = 4 * HS
CH = UOFF + 2 * US
L_KT = 4 * CH
L_VT = L_KT + 68 * 256
G1_GP = 1088
G1_UP = 8 * G1_GP
G1_STAGE = 16 * G1_GP
G2_STAGE = 16384
L_ST = 8 * G1_STAGE
LDS_ALL = 10 * G2_STAGE
assert L_VT + 16384 <= L_ST


class Cap:
    def __init__(self):
        self.l = []

    def __call__(self, fmt, *a):
        self.l += [x.strip() for x in (fmt % a if a else fmt).split("\n") if x.strip()]


class Null:
    def __call__(self, *a):
        pass


class VM:
    def __init__(self):
        self.q = []

    def issue(self, tag):
        self.q.append(tag)

    def need(self, tags):
        idx = [i for i, t in enumerate(self.q) if t in tags]
        assert len(set(self.q[i] for i in idx)) == len(set(tags)), (tags, self.q[-40:])
        n = len(self.q) - 1 - max(idx)
        assert n <= 63
        return n


def srd(a, dst, ptr, off, size):
    if off:
        a("s_add_u32 s%d, s%d, 0x%x\ns_addc_u32 s%d, s%d, 0", dst, ptr, off, dst + 1, ptr + 1)
    else:
        a("s_mov_b32 s%d, s%d", dst, ptr)
        a("s_mov_b32 s%d, s%d", dst + 1, ptr + 1)
    a("s_mov_b32 s%d, 0x%x", dst + 2, size)
    a("s_mov_b32 s%d, 0x20000", dst + 3)


def stamp(a, k):
    if STAMP:
        a("s_memtime s[96:97]")
        a("s_memrealtime s[98:99]")
        a("s_waitcnt lgkmcnt(0)")
        a("v_writelane_b32 v31, s96, %d", k)
        a("v_writelane_b32 v31, s98, %d", 32 + k)


def unpack(a, dst, src):
    a("v_lshlrev_b32 v%d, 16, v%d", dst, src)
    a("v_and_b32 v%d, 0xffff0000, v%d", dst + 1, src)


def line_offset(a, dst, line, t):
    a("s_lshr_b32 s%d, s%d, 3", t, line)
    a("s_cmp_eq_u32 s%d, 3", t)
    a("s_cselect_b32 s%d, 4, s%d", t, t)
    a("s_add_u32 s%d, s%d, 32", t, t)
    a("s_and_b32 s%d, s%d, 7", dst, line)
    a("s_cmp_eq_u32 s%d, 3", dst)
    a("s_cselect_b32 s%d, s%d, s%d", dst, t, line)
    a("s_lshl_b32 s%d, s%d, 7", dst, dst)


def frag_offsets(a, dst, t0, t1):
    a("v_lshlrev_b32 v%d, 4, v1", t0)
    a("v_and_b32 v%d, 0x70, v%d", t1, t0)
    a("v_and_b32 v%d, 56, v1", dst)
    a("v_cmp_eq_u32 vcc, 24, v%d", dst)
    for j in range(4):
        a("v_add_u32 v%d, %d, v%d", dst + j, 1024 * j, t0)
    for j in range(4):
        a("v_add_u32 v%d, %d, v%d", t0, 4096 + 128 * POS[j], t1)
        a("v_cndmask_b32 v%d, v%d, v%d, vcc", dst + j, dst + j, t0)


PUSH = geti("push", 1)
REP = geti("rep", 8)
FLK = lambda k: WS_FL + 65536 * k


def flag_store(a, k, grp, member, wave=0):
    a("s_cmp_lg_u32 %s, %d", WAVE, wave)
    a("s_cbranch_scc1 L_sig%d", k)
    a("s_lshl_b32 s100, %s, %d", grp, 13 if (PUSH and k != 2) else 8)
    a("s_lshl_b32 s101, %s, 2", member)
    a("s_add_u32 s100, s100, s101")
    a("s_add_u32 s100, s100, 0x%x", FLK(k))
    n = REP if k == 2 else (32 if PUSH else 1)
    a("v_lshlrev_b32 v29, %d, v1", 11 if k == 2 else 8)
    a("s_mov_b32 exec_lo, 0x%x", (1 << n) - 1)
    a("s_mov_b32 exec_hi, 0")
    a("buffer_store_dword v28, v29, %s, s100 offen sc1", WS)
    a("s_mov_b64 exec, -1")
    a("v_and_b32 v29, 31, v1")
    a("v_lshlrev_b32 v29, 2, v29")
    a.label("L_sig%d" % k)


def signal(a, k, grp, member, keep=0):
    a("s_waitcnt vmcnt(%d)", keep)
    a("s_barrier")
    flag_store(a, k, grp, member, geti("sigw", 1))


def inbox(a, k, grp, me, sreg):
    if PUSH:
        a("s_lshl_b32 s%d, %s, 5", sreg, grp)
        a("s_add_u32 s%d, s%d, %s", sreg, sreg, me)
        a("s_lshl_b32 s%d, s%d, 8", sreg, sreg)
    else:
        a("s_lshl_b32 s%d, %s, 8", sreg, grp)
    a("s_add_u32 s%d, s%d, 0x%x", sreg, sreg, FLK(k))


def poll(a, k, grp, me):
    a("s_cmp_lg_u32 %s, 0", WAVE)
    a("s_cbranch_scc1 L_got%d", k)
    if grp is None:
        a("v_lshrrev_b32 v29, 3, v1")
        a("v_lshlrev_b32 v29, 8, v29")
        a("v_and_b32 v30, 7, v1")
        a("v_lshl_add_u32 v29, v30, 4, v29")
        a("s_and_b32 s100, s2, %d", REP - 1)
        a("s_lshl_b32 s100, s100, 11")
        a("s_add_u32 s100, s100, 0x%x", FLK(k))
    else:
        a("v_and_b32 v29, 31, v1")
        a("v_lshlrev_b32 v29, 2, v29")
        inbox(a, k, grp, me, 100)
    a("s_mov_b32 s101, 0")
    a.label("L_poll%d" % k)
    if grp is None:
        a("buffer_load_dwordx4 v[244:247], v29, %s, s100 offen sc1", WS)
        a("s_waitcnt vmcnt(0)")
        a("v_xor_b32 v244, %s, v244", TAG)
        a("v_xor_b32 v245, %s, v245", TAG)
        a("v_xor_b32 v246, %s, v246", TAG)
        a("v_xor_b32 v247, %s, v247", TAG)
        a("v_or_b32 v244, v244, v245")
        a("v_or3_b32 v244, v244, v246, v247")
        a("v_cmp_ne_u32 vcc, 0, v244")
    else:
        a("buffer_load_dword v30, v29, %s, s100 offen sc1", WS)
        a("s_waitcnt vmcnt(0)")
        a("v_cmp_ne_u32 vcc, %s, v30", TAG)
    a("s_nop 4")
    a("s_cbranch_vccz L_got%d", k)
    if geti("slp", 0):
        a("s_sleep %d", geti("slp", 0))
    a("s_add_u32 s101, s101, 1")
    a("s_cmp_lt_u32 s101, 0x8000")
    a("s_cbranch_scc1 L_poll%d", k)
    a.label("L_got%d" % k)


def early_setup(a, k, grp, me, sreg):
    a("v_and_b32 v29, 31, v1")
    a("v_lshlrev_b32 v29, 2, v29")
    inbox(a, k, grp, me, sreg)


def early_load(sreg):
    return "buffer_load_dword v30, v29, %s, s%d offen sc1" % (WS, sreg)


def early_check(a, k, sreg, keep):
    a("s_mov_b32 s101, 0")
    a("s_waitcnt vmcnt(%d)", keep)
    a.label("L_poll%d" % k)
    a("v_cmp_ne_u32 vcc, %s, v30", TAG)
    a("s_nop 4")
    a("s_cbranch_vccz L_got%d", k)
    a(early_load(sreg))
    a("s_add_u32 s101, s101, 1")
    a("s_cmp_lt_u32 s101, 0x8000")
    a("s_waitcnt vmcnt(0)")
    a("s_cbranch_scc1 L_poll%d", k)
    a.label("L_got%d" % k)


def await_(a, k, grp, me=None):
    poll(a, k, grp, me)
    a("s_barrier")


def code_touch(a, r, vtmp, lo, tag):
    a("s_cmp_lg_u32 %s, 3", WAVE)
    a("s_cbranch_scc1 L_ct%s", tag)
    a("s_add_u32 s%d, s6, %s-L_pc", r, lo)
    a("s_addc_u32 s%d, s7, 0", r + 1)
    a("s_mov_b32 s%d, L_code_end-%s", r + 2, lo)
    a("s_mov_b32 s%d, 0x20000", r + 3)
    a("s_lshl_b32 s100, %s, 7", IDX)
    a("v_lshlrev_b32 v%d, 12, v1", vtmp)
    a("buffer_load_dword v%d, v%d, %s, s100 offen", vtmp, vtmp, q4(r))
    a.label("L_ct%s" % tag)


HP = 40
VA, VB, VYW, VUR, VCK, VT0, VT1, VWS, VHO, VXT, VYO, VT2, VWD = 240, 241, 242, 243, 244, 245, 246, 247, 248, 249, 250, 251, 252


XEARLY = geti("xearly", 0)
TLB = geti("tlb", 0)
x_loads = lambda r: ["buffer_load_dwordx4 %s, v%d, %s, 0 offen offset:%d %s" % (ar(XA + 4 * i, 4), VHO, q4(r), 512 * i, NT)
                     for i in range(4)]


def phase_pre(a):
    a("s_cmp_ge_u32 s2, 256")
    a("s_cbranch_scc1 L_end")
    a("s_load_dwordx16 s[8:23], s[0:1], 0")
    a("s_load_dwordx8 s[24:31], s[0:1], 64")
    a("s_load_dwordx2 s[32:33], s[0:1], 96")
    a("s_getpc_b64 s[6:7]")
    a.label("L_pc")
    a("v_lshrrev_b32 v2, 6, v0")
    a("v_and_b32 v1, 63, v0")
    a("v_readfirstlane_b32 s5, v2")
    a("s_and_b32 s3, s2, 7")
    a("s_lshr_b32 s4, s2, 3")
    if STAMP:
        a("v_mov_b32 v31, 0")
        stamp(a, 0)
    if geti("ct", 1):
        code_touch(a, R1, 30, "L_pc", "a")
    a("s_lshl_b32 s64, %s, 6", IDX)
    a("s_lshl_b32 s65, %s, 4", WAVE)
    a("s_add_u32 s64, s64, s65")
    a("v_lshrrev_b32 v12, 4, v1")
    a("v_add_u32 v13, s64, v12")
    a("v_lshlrev_b32 v13, 11, v13")
    a("v_and_b32 v14, 15, v1")
    a("s_lshl_b32 s65, %s, 2", WAVE)
    a("v_xor_b32 v15, s65, v14")
    a("v_lshl_add_u32 v13, v15, 4, v13")
    a("s_lshl_b32 s66, %s, 8", XCD)
    a("v_add_u32 v13, s66, v13")
    a("v_xor_b32 v15, 32, v13")
    a("v_xor_b32 v14, 14, v14")
    a("v_lshlrev_b32 v12, 11, v12")
    a("v_lshl_add_u32 v14, v14, 4, v12")
    a("s_lshl_b32 s67, %s, 17", IDX)
    a("s_add_u32 s67, s67, s66")
    a("s_sub_u32 s67, s67, 8192")
    a("s_cmp_eq_u32 %s, 0", IDX)
    a("s_cselect_b32 s67, 0x40000000, s67")
    a("s_lshl_b32 s68, %s, 12", WAVE)
    a("s_mov_b32 s74, 8192")
    a("s_mov_b32 s75, 16384")
    a("s_mov_b32 s76, 24576")
    a("v_lshrrev_b32 v16, 3, v0")
    a("s_lshl_b32 s65, %s, 5", XCD)
    a("v_add_u32 v17, s65, v16")
    a("v_lshlrev_b32 v12, 5, v17")
    for r in (R3, R6):
        a("s_mov_b32 s%d, 0x%x", r + 2, S * D * 2)
        a("s_mov_b32 s%d, 0x20000", r + 3)
    a("s_waitcnt lgkmcnt(0)")
    for r, p in ((R3, PK), (R6, PV)):
        a("s_mov_b32 s%d, s%d", r, p)
        a("s_mov_b32 s%d, s%d", r + 1, p + 1)
    so = ["0", "s74", "s75", "s76"]
    for base, r in ((L_KT + 1024, R3), (L_VT, R6)):
        for n in range(4):
            a("s_add_u32 m0, s68, %d", base + 1024 * n)
            a("buffer_load_dwordx4 %s, %s, %s offen %s lds", "v15" if n >= 2 else "v13", q4(r), so[n], NT)
    a("s_cmp_lg_u32 %s, 0", WAVE)
    a("s_cbranch_scc1 L_pre_nohalo")
    a("s_mov_b32 m0, %d", L_KT)
    a("buffer_load_dwordx4 v14, %s, s67 offen %s lds", q4(R3), NT)
    a.label("L_pre_nohalo")
    WR = 32
    srd(a, R0, PSH, 0, D * 8)
    a("buffer_load_dwordx4 %s, v12, %s, 0 offen", vr(WR, 4), q4(R0))
    a("buffer_load_dwordx4 %s, v12, %s, 0 offen offset:16", vr(WR + 4, 4), q4(R0))
    srd(a, RW, PWS, 0, WS_END)
    a("s_mov_b32 s64, 0x%x", WS_FL)
    a("buffer_load_dword v28, off, %s, s64 sc0 sc1", WS)
    srd(a, R4, PSK, 0, D * S * 2)
    a("s_lshl_b32 s70, %s, 5", XCD)
    a("s_add_u32 s70, s70, %s", IDX)
    a("s_lshl_b32 s64, s70, 3")
    a("s_load_dwordx2 s[30:31], %s, s64", sr(PSD, 2))
    a("s_lshl_b32 s71, s70, 2")
    a("s_add_u32 s71, s71, %s", WAVE)
    a("s_lshl_b32 s64, s71, 12")
    a("v_lshlrev_b32 v12, 4, v1")
    for i in range(4):
        a("buffer_load_dwordx4 %s, v12, %s, s64 offen offset:%d %s", vr(HP + 6 * i + 2, 4), q4(R4), 1024 * i, NT)
    a("s_and_b32 %s, %s, 7", RG, IDX)
    a("s_lshl_b32 %s, %s, 3", RG, RG)
    a("s_add_u32 %s, %s, %s", RG, RG, XCD)
    a("s_lshl_b32 %s, %s, 2", RG, RG)
    a("s_lshr_b32 s64, %s, 3", IDX)
    a("s_add_u32 %s, %s, s64", RG, RG)
    srd(a, R5, PQ, 0, S * D * 2)
    a("v_and_b32 v18, 7, v0")
    a("v_lshlrev_b32 v12, 11, v18")
    a("v_lshl_add_u32 v12, v16, 4, v12")
    a("s_lshl_b32 s64, %s, 14", RG)
    a("v_add_u32 v%d, s64, v12", VHO)
    later = 5
    if TLB:
        a("v_lshlrev_b32 v12, 20, v1")
        for n, tab in enumerate((((PWS, WS_END), (PWG, D * F * 2), (PWD, D * F * 2), (POUT, S * D * 2)),
                                 ((PWS, 0), (PWU, D * F * 2), (PQ, S * D * 2), (PWS, 0)))):
            srd(a, R0, tab[0][0], 0, tab[0][1])
            for w in range(1, 4):
                a("s_cmp_eq_u32 %s, %d", WAVE, w)
                a("s_cselect_b32 s%d, s%d, s%d", R0, tab[w][0], R0)
                a("s_cselect_b32 s%d, s%d, s%d", R0 + 1, tab[w][0] + 1, R0 + 1)
                a("s_cselect_b32 s%d, 0x%x, s%d", R0 + 2, tab[w][1], R0 + 2)
            a("buffer_load_dword v29, v12, %s, 0 offen nt", q4(R0))
        later += 2
    if XEARLY:
        for l in x_loads(R5):
            a(l)
        later += 4
    a("v_lshrrev_b32 v12, 1, v16")
    a("v_lshlrev_b32 v13, 1, v18")
    a("v_xor_b32 v19, v12, v13")
    a("v_add_u32 v13, 14, v13")
    a("v_and_b32 v13, 14, v13")
    a("v_xor_b32 v20, v12, v13")
    a("v_and_b32 v12, 1, v16")
    a("v_lshlrev_b32 v12, 3, v12")
    a("v_lshl_add_u32 v12, v18, 11, v12")
    a("v_add_u32 v12, %d, v12", L_KT)
    a("v_lshl_add_u32 v19, v19, 4, v12")
    a("v_lshl_add_u32 v20, v20, 4, v12")
    a("v_mul_u32_u24 v21, %d, v17", 4 * BLK)
    a("v_lshlrev_b32 v12, 4, v18")
    a("v_sub_u32 v21, v21, v12")
    a("s_sub_u32 s65, 31, %s", IDX)
    line_offset(a, 64, 65, 66)
    a("s_add_u32 s64, s64, 0x%x", WS_UB + 112)
    a("v_add_u32 v21, s64, v21")
    a("s_mov_b32 s74, %d", BLK)
    a("s_mov_b32 s75, %d", 2 * BLK)
    a("s_mov_b32 s76, %d", 3 * BLK)
    conv_setup(a)
    KR, VR, WTF, KF, VF, KS = 64, 86, 102, 118, 162, 194
    a("s_waitcnt vmcnt(%d)", later)
    a("s_barrier")
    stamp(a, 1)
    for j in range(3):
        a("ds_read_b64 %s, v20 offset:%d", vr(KR + 2 * j, 2), 256 * (1 + j))
    for j in range(8):
        a("ds_read_b64 %s, v19 offset:%d", vr(KR + 6 + 2 * j, 2), 256 * (4 + j))
    for j in range(3):
        a("ds_read_b64 %s, v19 offset:%d", vr(VR + 2 * j, 2), L_VT - L_KT + 256 * j)
    for c in range(4):
        for j in range(4):
            src = WR + 2 * c + (j >> 1)
            if j & 1:
                a("v_and_b32 v%d, 0xffff0000, v%d", WTF + 4 * j + c, src)
            else:
                a("v_lshlrev_b32 v%d, 16, v%d", WTF + 4 * j + c, src)
    a("s_waitcnt lgkmcnt(3)")
    for j in range(3, 8):
        a("ds_read_b64 %s, v19 offset:%d", vr(VR + 2 * j, 2), L_VT - L_KT + 256 * j)
    for j in range(11):
        unpack(a, KF + 4 * j, KR + 2 * j)
        unpack(a, KF + 4 * j + 2, KR + 2 * j + 1)
    a("s_waitcnt lgkmcnt(0)")
    for jp in range(4):
        js = (2 * jp, 2 * jp + 1)
        for j in js:
            unpack(a, VF + 4 * j, VR + 2 * j)
            unpack(a, VF + 4 * j + 2, VR + 2 * j + 1)
        ks = lambda j, p: vr(KS + 4 * (j & 1) + 2 * p, 2)
        for j in js:
            for p in range(2):
                a("v_pk_mul_f32 %s, %s, %s", ks(j, p), vr(KF + 4 * j + 2 * p, 2), vr(WTF + 12 + 2 * p, 2))
        for tap in (2, 1, 0):
            for j in js:
                for p in range(2):
                    a("v_pk_fma_f32 %s, %s, %s, %s", ks(j, p), vr(KF + 4 * (j + 3 - tap) + 2 * p, 2),
                      vr(WTF + 4 * tap + 2 * p, 2), ks(j, p))
        for j in js:
            for p in range(2):
                a("v_pk_mul_f32 %s, %s, %s", vr(VF + 4 * j + 2 * p, 2), ks(j, p), vr(VF + 4 * j + 2 * p, 2))
    W = 64
    for c in range(4):
        for n in range(4):
            a("v_cvt_pk_bf16_f32 v%d, v%d, v%d", W + 4 * c + n, VF + 4 * (7 - 2 * n) + c, VF + 4 * (6 - 2 * n) + c)
        a("buffer_store_dwordx4 %s, v21, %s, %s offen sc1", vr(W + 4 * c, 4), WS, so[c])
    a("s_waitcnt vmcnt(%d)", later - 1)
    stamp(a, 2)
    a("v_readfirstlane_b32 s64, v28")
    a("s_mul_i32 %s, s64, 0x9e3779b1", TAG)
    a("s_add_u32 %s, %s, 0x7f4a7c15", TAG, TAG)
    a("v_mov_b32 v28, %s", TAG)


def conv_setup(a):
    a("s_mul_i32 s69, %s, %d", WAVE, CH)
    a("v_lshlrev_b32 v12, 4, v1")
    a("v_add_u32 v%d, s69, v12", VCK)
    a("v_mov_b32 v2, 0")
    a("v_mov_b32 v3, 0")
    a("v_bfe_u32 v12, v1, 3, 2")
    a("v_mul_u32_u24 v12, %d, v12", HS)
    a("v_and_b32 v13, 7, v1")
    a("v_min_u32 v13, 5, v13")
    a("v_lshl_add_u32 v12, v13, 3, v12")
    a("v_add_u32 v12, s69, v12")
    a("ds_write_b64 v12, v[2:3]")
    a("v_min_u32 v13, 56, v1")
    a("v_lshlrev_b32 v13, 3, v13")
    a("v_add_u32 v13, s69, v13")
    a("ds_write_b64 v13, v[2:3] offset:%d", UOFF + 4088)
    a("ds_write_b64 v13, v[2:3] offset:%d", UOFF + US + 4096)
    a("v_and_b32 v12, 3, v1")
    a("v_mul_u32_u24 v12, %d, v12", HS)
    a("v_bfe_u32 v13, v1, 2, 2")
    a("v_lshrrev_b32 v14, 4, v1")
    a("v_add_u32 v13, v13, v14")
    a("v_lshl_add_u32 v12, v13, 4, v12")
    a("v_add_u32 v%d, s69, v12", VA)
    a("v_and_b32 v12, 1, v1")
    a("v_bfe_u32 v13, v1, 1, 3")
    a("v_mul_u32_u24 v15, %d, v12", US)
    a("v_lshlrev_b32 v13, 2, v13")
    a("v_sub_u32 v16, v14, v13")
    a("v_add_u32 v16, 28, v16")
    a("v_lshl_add_u32 v15, v16, 4, v15")
    a("v_add_u32 v%d, s69, v15", VB)
    a("v_add_u32 v13, v13, v14")
    a("v_lshlrev_b32 v16, 4, v13")
    a("v_lshl_add_u32 v16, v12, 3, v16")
    a("v_add_u32 v%d, s69, v16", VYW)
    a("v_sub_u32 v16, %d, v16", 31 * 16 + 8)
    a("v_add_u32 v%d, s69, v16", VUR)
    frag_offsets(a, 8, 12, 13)
    a("s_mul_i32 s83, s71, %d", BLK)
    a("s_add_u32 s83, s83, 0x%x", WS_UB)
    a("s_and_b32 s64, %s, 1", WAVE)
    a("s_cmp_eq_u32 s64, 0")
    a("s_cselect_b32 s%d, s%d, s%d", R1, PWG, PWU)
    a("s_cselect_b32 s%d, s%d, s%d", R1 + 1, PWG + 1, PWU + 1)
    a("s_mov_b32 s%d, 0x%x", R1 + 2, D * F * 2)
    a("s_mov_b32 s%d, 0x20000", R1 + 3)
    a("v_lshrrev_b32 v3, 3, v1")
    a("v_mul_u32_u24 v3, 7168, v3")
    a("v_and_b32 v12, 7, v1")
    a("v_min_u32 v12, 6, v12")
    a("v_lshl_add_u32 v3, v12, 7, v3")
    a("s_lshl_b32 s64, %s, 1", IDX)
    a("s_lshr_b32 s65, %s, 1", WAVE)
    a("s_add_u32 s64, s64, s65")
    a("s_mul_i32 s88, s64, %d", 8 * 7168)
    a("s_mul_i32 s65, %s, 896", XCD)
    a("s_add_u32 s88, s88, s65")
    a("v_lshrrev_b32 v12, 4, v0")
    a("s_mul_i32 s64, s2, 14")
    a("v_add_u32 v13, s64, v12")
    a("v_bfe_u32 v14, v0, 3, 1")
    a("v_and_b32 v15, 7, v0")
    a("v_lshlrev_b32 v16, 11, v13")
    a("v_lshl_add_u32 v16, v14, 10, v16")
    a("v_lshl_add_u32 v16, v15, 4, v16")
    a("v_add_u32 v16, 384, v16")
    a("v_lshlrev_b32 v17, 9, v13")
    a("v_lshl_add_u32 v17, v14, 8, v17")
    a("v_lshl_add_u32 v17, v15, 4, v17")
    a("v_add_u32 v17, 0x%x, v17", WS_WC)
    a("v_mov_b32 v15, 0x7fff0000")
    a("v_cmp_le_u32 vcc, 14, v12")
    a("v_cndmask_b32 v%d, v16, v15, vcc", VT1)
    a("v_cndmask_b32 v%d, v17, v15, vcc", VWS)
    a("s_lshl_b32 s64, %s, 10", WAVE)
    a("v_lshlrev_b32 v12, 2, v1")
    a("v_add_u32 v%d, s64, v12", VT0)
    a("v_add_u32 v%d, %d, v%d", VT2, 2 * CH, VT0)
    a("v_lshrrev_b32 v12, 2, v1")
    a("v_mul_u32_u24 v12, %d, v12", 4 * BLK)
    a("v_and_b32 v13, 3, v1")
    a("v_lshl_add_u32 v12, v13, 4, v12")
    a("s_bfe_u32 s65, s70, 0x50001")
    line_offset(a, 64, 65, 66)
    a("s_lshr_b32 s65, s70, 6")
    a("s_mul_i32 s65, s65, %d", BLK)
    a("s_add_u32 s64, s64, s65")
    a("s_and_b32 s65, s70, 1")
    a("s_lshl_b32 s65, s65, 6")
    a("s_add_u32 s64, s64, s65")
    a("s_mul_i32 s65, %s, %d", WAVE, 64 * 4 * BLK)
    a("s_add_u32 s64, s64, s65")
    a("v_add_u32 v4, s64, v12")
    a("s_mov_b32 s20, 0x05040100")
    a("s_mov_b32 s21, 0x07060302")
    a("s_waitcnt lgkmcnt(0)")
    a("s_cmp_ge_u32 %s, 2", WAVE)
    a("s_cselect_b32 s84, s31, s30")
    a("s_and_b32 s85, %s, 1", WAVE)
    a("s_xor_b32 s85, s85, 1")
    a("s_lshl_b32 s85, s85, 4")
    a("s_lshl_b32 s84, s84, s85")
    a("s_and_b32 s84, s84, 0xffff0000")
    a("s_mov_b32 s85, s84")


def build_h(a):
    for i in range(4):
        M0, M1, P0, P1, P2, P3 = [HP + 6 * i + x for x in range(6)]
        a("ds_write_b128 v%d, %s offset:%d", VCK, vr(P0, 4), 48 + 1024 * i + 3 * HS)
        a("v_mov_b32_dpp v%d, v%d wave_shr:1 row_mask:0xf bank_mask:0xf bound_ctrl:0", M0, P2)
        a("v_mov_b32_dpp v%d, v%d wave_shr:1 row_mask:0xf bank_mask:0xf bound_ctrl:0", M1, P3)
        if i:
            a("v_readlane_b32 s64, v%d, 63", P2 - 6)
            a("v_readlane_b32 s65, v%d, 63", P3 - 6)
            a("v_writelane_b32 v%d, s64, 0", M0)
            a("v_writelane_b32 v%d, s65, 0", M1)
    for i in range(4):
        M0, M1, P0, P1, P2, P3 = [HP + 6 * i + x for x in range(6)]
        T = 160 + 12 * i
        base = 48 + 1024 * i
        for n, (hi, lo) in enumerate([(M1, M0), (P0, M1), (P1, P0), (P2, P1)]):
            a("v_alignbit_b32 v%d, v%d, v%d, 16", T + n, hi, lo)
        a("ds_write_b128 v%d, %s offset:%d", VCK, vr(T, 4), base + 0 * HS)
        for n, src in enumerate([M1, P0, P1, P2]):
            a("v_mov_b32 v%d, v%d", T + 4 + n, src)
        a("ds_write_b128 v%d, %s offset:%d", VCK, vr(T + 4, 4), base + 1 * HS)
        for n, (hi, lo) in enumerate([(P0, M1), (P1, P0), (P2, P1), (P3, P2)]):
            a("v_alignbit_b32 v%d, v%d, v%d, 16", T + 8 + n, hi, lo)
        a("ds_write_b128 v%d, %s offset:%d", VCK, vr(T + 8, 4), base + 2 * HS)


def phase_conv(a, shadow):
    for i in range(4):
        a("buffer_load_dwordx4 %s, v%d, %s, s83 offen sc1", vr(64 + 4 * i, 4), 8 + i, WS)
    srd(a, R3, PWD, 0, F * D * 2)
    AB = [32, 64]
    BB = [96, 128]
    ACC, UE, UF = 160, 192, 208
    rdA = lambda kp, t: "ds_read_b128 %s, v%d offset:%d" % (vr(AB[kp & 1] + 4 * t, 4), VA, 512 * t + 64 * kp)
    rdB = lambda kp, c: "ds_read_b128 %s, v%d offset:%d" % (vr(BB[kp & 1] + 4 * c, 4), VB, UOFF + 3584 - 512 * c + 64 * kp)
    for t in range(8):
        a(rdA(0, t))
    for i in range(4):
        a("s_waitcnt vmcnt(%d)", 3 - i)
        a("ds_write_b128 v%d, %s offset:%d", VCK, vr(64 + 4 * i, 4), UOFF + US + 1024 * i)
        a("ds_write_b64 v%d, %s offset:%d", VCK, vr(64 + 4 * i, 2), UOFF - 8 + 1024 * i)
        a("ds_write_b64 v%d, %s offset:%d", VCK, vr(66 + 4 * i, 2), UOFF + 1024 * i)
    stamp(a, 5)
    for c in range(7, -1, -1):
        a(rdB(0, c))
    bg = {geti("wcat", 59): "buffer_load_dwordx4 %s, v%d, %s, 0 offen %s" % (vr(VWD, 4), VT1, q4(R3), NT)}
    if not XEARLY:
        srd(a, R6, PQ, 0, S * D * 2)
        for i, l in enumerate(x_loads(R6)):
            bg[geti("xat", 21) + 8 * i] = l
    if geti("pf", 1):
        bg[geti("pfat", 75)] = "buffer_load_dword v30, v3, %s, s88 offen" % q4(R1)
    shadow = list(shadow)
    for kp in range(8):
        buf = kp & 1
        fill = ([rdA(kp + 1, 0)] + [rdB(kp + 1, c) for c in range(8)] + [rdA(kp + 1, t) for t in range(1, 8)]) if kp < 7 else []
        extra = []
        if kp == 7:
            fill = ["ds_read_b64 %s, v%d offset:%d" % (vr(UE + 2 * c, 2), VUR, UOFF + US + 3584 - 512 * c) for c in range(8)]
            for c in range(8):
                extra.append("v_and_b32 v%d, 0xffff0000, v%d" % (UF + 4 * c + 0, UE + 2 * c + 1))
                extra.append("v_lshlrev_b32 v%d, 16, v%d" % (UF + 4 * c + 1, UE + 2 * c + 1))
                extra.append("v_and_b32 v%d, 0xffff0000, v%d" % (UF + 4 * c + 2, UE + 2 * c))
                extra.append("v_lshlrev_b32 v%d, 16, v%d" % (UF + 4 * c + 3, UE + 2 * c))
        if kp:
            a("s_waitcnt lgkmcnt(0)")
        n = 0
        waited = False
        for t in range(8):
            cs = range(7 - t, -1, -1) if t % 2 == 0 else range(8 - t)
            for c in cs:
                if kp == 0 and t == 0:
                    a("s_waitcnt lgkmcnt(%d)", c)
                acc = vr(ACC + 4 * (t + c), 4)
                src = "0" if (kp == 0 and t == 0) else acc
                a("v_mfma_f32_16x16x32_bf16 %s, %s, %s, %s", acc, vr(AB[buf] + 4 * t, 4), vr(BB[buf] + 4 * c, 4), src)
                n += 1
                room = 2
                first = kp == 0 and t == 0
                if fill and not first and (n % 2 == 0 or kp == 7 or (kp == 0 and n < 18)):
                    a(fill.pop(0))
                    room -= 1
                elif extra and not fill and n >= 18:
                    if not waited:
                        a("s_waitcnt lgkmcnt(0)")
                        waited = True
                    a(extra.pop(0))
                    a(extra.pop(0))
                    room = 0
                gi = 36 * kp + n
                if gi in bg:
                    a(bg[gi])
                    room = 0
                while room and shadow and kp < 7:
                    a(shadow.pop(0))
                    room -= 1
        assert not fill and not extra
    assert not shadow, len(shadow)
    stamp(a, 6)
    for c in range(8):
        for p in range(2):
            r = ACC + 4 * c + 2 * p
            a("v_pk_fma_f32 %s, %s, s[84:85], %s", vr(r, 2), vr(UF + 4 * c + 2 * p, 2), vr(r, 2))
        a("v_cvt_pk_bf16_f32 v%d, v%d, v%d", 32 + 2 * c, ACC + 4 * c, ACC + 4 * c + 1)
        a("v_cvt_pk_bf16_f32 v%d, v%d, v%d", 33 + 2 * c, ACC + 4 * c + 2, ACC + 4 * c + 3)
        a("ds_write_b64 v%d, %s offset:%d", VYW, vr(32 + 2 * c, 2), 512 * c)
    a("s_waitcnt lgkmcnt(0)")
    a("s_barrier")
    Y, O = 160, 176
    for n in range(4):
        for c in range(4):
            a("ds_read_b32 v%d, v%d offset:%d", Y + 4 * n + c, VT0 if c < 2 else VT2, (c & 1) * CH + 256 * n)
    for n in range(4):
        a("s_mov_b32 s64, 0x%x", WS_YB + 16 * 4 * BLK * n)
        a("s_waitcnt lgkmcnt(%d)", 4 * (3 - n))
        y = Y + 4 * n
        a("v_perm_b32 v%d, v%d, v%d, s20", O + 4 * n + 0, y + 1, y + 0)
        a("v_perm_b32 v%d, v%d, v%d, s20", O + 4 * n + 1, y + 3, y + 2)
        a("v_perm_b32 v%d, v%d, v%d, s21", O + 4 * n + 2, y + 1, y + 0)
        a("v_perm_b32 v%d, v%d, v%d, s21", O + 4 * n + 3, y + 3, y + 2)
        a("buffer_store_dwordx4 %s, v4, %s, s64 offen sc1", vr(O + 4 * n, 4), WS)
    stamp(a, 7)


XR, YR, XF, YF, LT, LX = 32, 48, 64, 96, 128, 144


def ln_stats(a, X, lds_off):
    T = LT
    a("v_and_b32 v16, 7, v0")
    a("v_lshlrev_b32 v16, 5, v16")
    a("v_add_u32 v16, %d, v16", L_ST + lds_off)
    a("s_lshl_b32 s64, %s, 3", WAVE)
    a("v_add_u32 v17, s64, v16")
    for c in range(4):
        a("v_pk_add_f32 %s, %s, %s", vr(T + 2 * c, 2), vr(X + 2 * c, 2), vr(X + 8 + 2 * c, 2))
        a("v_pk_mul_f32 %s, %s, %s", vr(T + 8 + 2 * c, 2), vr(X + 2 * c, 2), vr(X + 2 * c, 2))
    for g in (8, 16, 24):
        for c in range(4):
            x = vr(X + g + 2 * c, 2)
            if g > 8:
                a("v_pk_add_f32 %s, %s, %s", vr(T + 2 * c, 2), vr(T + 2 * c, 2), x)
            a("v_pk_fma_f32 %s, %s, %s, %s", vr(T + 8 + 2 * c, 2), x, x, vr(T + 8 + 2 * c, 2))
    for b in (T, T + 8):
        a("v_pk_add_f32 %s, %s, %s", vr(b, 2), vr(b, 2), vr(b + 2, 2))
        a("v_pk_add_f32 %s, %s, %s", vr(b + 4, 2), vr(b + 4, 2), vr(b + 6, 2))
    for b in (T, T + 8):
        a("v_pk_add_f32 %s, %s, %s", vr(b, 2), vr(b, 2), vr(b + 4, 2))
    a("v_add_f32 v12, v%d, v%d", T, T + 1)
    a("v_add_f32 v13, v%d, v%d", T + 8, T + 9)
    for r in (12, 13):
        a("v_add_f32_dpp v%d, v%d, v%d row_ror:8 row_mask:0xf bank_mask:0xf", r, r, r)
    for op in ("v_permlane16_swap_b32", "v_permlane32_swap_b32"):
        a("v_mov_b32 v14, v12")
        a("v_mov_b32 v15, v13")
        a("%s v12, v14", op)
        a("%s v13, v15", op)
        a("v_pk_add_f32 v[12:13], v[12:13], v[14:15]")
    a("ds_write_b64 v17, v[12:13]")
    a("s_waitcnt lgkmcnt(0)")
    a("s_barrier")
    a("ds_read_b128 %s, v16", vr(T, 4))
    a("ds_read_b128 %s, v16 offset:16", vr(T + 4, 4))
    a("s_waitcnt lgkmcnt(0)")
    a("v_pk_add_f32 %s, %s, %s", vr(T, 2), vr(T, 2), vr(T + 2, 2))
    a("v_pk_add_f32 %s, %s, %s", vr(T + 4, 2), vr(T + 4, 2), vr(T + 6, 2))
    a("v_pk_add_f32 v[12:13], %s, %s", vr(T, 2), vr(T + 4, 2))
    a("v_mul_f32 v12, 0x3a800000, v12")
    a("v_mul_f32 v13, 0x3a800000, v13")
    a("v_fma_f32 v13, -v12, v12, v13")
    a("v_max_f32 v13, 0, v13")
    a("v_cvt_pk_bf16_f32 v12, v12, v13")
    a("v_and_b32 v13, 0xffff0000, v12")
    a("v_lshlrev_b32 v12, 16, v12")
    a("v_add_f32 v13, 0x3727c5ac, v13")
    a("v_cvt_pk_bf16_f32 v13, v13, v13")
    a("v_lshlrev_b32 v13, 16, v13")
    a("v_sqrt_f32 v13, v13")
    a("v_cvt_pk_bf16_f32 v13, v13, v13")
    a("v_lshlrev_b32 v13, 16, v13")
    a("v_rcp_f32 v18, v13")
    a("v_rcp_f32 v19, v13")
    a("v_mul_f32_e64 v20, -v12, v18")
    a("v_mul_f32_e64 v21, -v12, v18")


def x_unpack(a):
    for i in range(16):
        a("v_accvgpr_read_b32 v%d, a%d", XR + i, XA + i)
    for i in range(16):
        unpack(a, XF + 2 * i, XR + i)


def ln_setup(a):
    a("v_and_b32 v12, 7, v0")
    a("v_lshrrev_b32 v13, 3, v0")
    a("s_cmp_eq_u32 %s, 3", WAVE)
    a("s_cselect_b32 s64, 4, %s", WAVE)
    a("s_add_u32 s64, s64, 32")
    a("v_mov_b32 v15, s64")
    a("v_and_b32 v14, 7, v13")
    a("v_cmp_eq_u32 vcc, 3, v14")
    a("v_cndmask_b32 v14, v13, v15, vcc")
    a("v_lshlrev_b32 v14, 7, v14")
    a("v_lshl_add_u32 v14, v12, 3, v14")
    a("s_mul_i32 s64, %s, %d", RG, 4 * BLK)
    a("v_add_u32 v%d, s64, v14", VYO)
    a("s_bfe_u32 s68, %s, 0x20001", RG)
    a("s_and_b32 s93, %s, 1", RG)
    a("s_lshl_b32 s64, s68, 10")
    a("s_lshl_b32 s94, s93, 7")
    a("s_add_u32 s64, s64, s94")
    a("s_cmp_eq_u32 s68, 3")
    a("s_cselect_b32 s68, 4, s68")
    a("s_lshl_b32 s68, s68, 7")
    a("s_add_u32 s68, s68, 4096")
    a("s_add_u32 s94, s64, 256")
    a("s_cmp_eq_u32 s93, 1")
    a("s_cselect_b32 s68, s68, s94")
    a("v_and_b32 v14, 3, v13")
    a("v_lshlrev_b32 v15, 8, v14")
    a("v_add_u32 v15, s64, v15")
    a("v_cmp_eq_u32 vcc, 1, v14")
    a("v_mov_b32 v14, s68")
    a("v_cndmask_b32 v15, v15, v14, vcc")
    a("v_lshl_add_u32 v15, v12, 4, v15")
    a("v_lshrrev_b32 v14, 2, v13")
    a("v_mul_u32_u24 v14, %d, v14", BLK)
    a("v_add_u32 v15, v15, v14")
    a("s_lshr_b32 s64, %s, 3", RG)
    a("s_mul_i32 s64, s64, %d", 32 * BLK)
    a("v_add_u32 v%d, s64, v15", VXT)


def phase_ln(a, after_loads, n_after):
    for i in range(4):
        a("s_mov_b32 s64, 0x%x", WS_YB + BLK * i)
        for hf in range(2):
            a("buffer_load_dwordx2 %s, v%d, %s, s64 offen offset:%d sc1", vr(YR + 4 * i + 2 * hf, 2), VYO, WS, 64 * hf)
    after_loads()
    for i in range(4):
        a("s_waitcnt vmcnt(%d)", 2 * (3 - i) + n_after)
        ks = range(4 * i, 4 * i + 4)
        for k in ks:
            unpack(a, YF + 2 * k, YR + k)
        for k in ks:
            a("v_pk_fma_f32 %s, %s, %s, %s", vr(YF + 2 * k, 2), vr(LX + 2 * k, 2), vr(YF + 2 * k, 2), vr(XF + 2 * k, 2))
        for k in ks:
            a("v_cvt_pk_bf16_f32 v%d, v%d, v%d", XR + k, YF + 2 * k, YF + 2 * k + 1)
        for k in ks:
            unpack(a, XF + 2 * k, XR + k)
    stamp(a, 10)
    ln_stats(a, XF, 256)
    for i in range(4):
        ks = range(4 * i, 4 * i + 4)
        a("s_mov_b32 s64, 0x%x", WS_XT + 8 * BLK * i)
        for k in ks:
            a("v_pk_fma_f32 %s, %s, v[18:19], v[20:21]", vr(XF + 2 * k, 2), vr(XF + 2 * k, 2))
        for k in ks:
            a("v_cvt_pk_bf16_f32 v%d, v%d, v%d", YR + k, XF + 2 * k, XF + 2 * k + 1)
        a("buffer_store_dwordx4 %s, v%d, %s, s64 offen sc1", vr(YR + 4 * i, 4), VXT, WS)
    stamp(a, 11)


def place_loads(gaps, items, slots):
    place = {}
    assert len(items) <= len(slots), (len(items), len(slots))
    for i, it in enumerate(items):
        sl = slots[(i * len(slots)) // len(items)]
        assert sl not in place
        place[sl] = it
    prev = -1
    for sl in sorted(place):
        for k, pi in enumerate(reversed(place[sl][0])):
            g = min(max(prev + 1, sl - 1 - k, 0), sl)
            gaps[g].insert(0, pi)
        prev = sl
    return place


def emit_items(a, items, vm=None):
    for it in items:
        for p in it[0]:
            a(p)
        a(it[1])
        if vm:
            vm.issue(it[2])


class G1:
    NST = 32
    WF, XF, ACC = 0, 32, 32

    def __init__(self, a):
        self.a = a
        self.vm = VM()
        self.waits = []

    def setup(self, a):
        a("s_lshr_b32 s71, %s, 3", IDX)
        a("s_lshl_b32 s64, %s, 2", XCD)
        a("s_add_u32 s71, s71, s64")
        a("s_and_b32 s72, %s, 7", IDX)
        a("v_mul_u32_u24 v26, 4682, v1")
        a("v_lshrrev_b32 v26, 16, v26")
        a("v_mul_u32_u24 v27, 14, v26")
        a("v_sub_u32 v27, v1, v27")
        a("s_lshl_b32 s64, %s, 3", WAVE)
        a("v_add_u32 v26, s64, v26")
        a("v_mul_u32_u24 v26, 7168, v26")
        a("v_lshl_add_u32 v26, v27, 4, v26")
        a("s_mul_i32 s64, s71, 224")
        a("v_add_u32 v26, s64, v26")
        a("v_mov_b32 v27, 0x7fff0000")
        a("v_cmp_le_u32 vcc, 56, v1")
        a("v_cndmask_b32 v26, v26, v27, vcc")
        a("v_add_u32 v27, %d, v26", 4 * 7168)
        a("s_mul_i32 s86, %s, %d", WAVE, 2 * G1_GP)
        a("s_mov_b32 s87, 0")
        srd(a, R4, PWG, 0, D * F * 2)
        srd(a, R5, PWU, 0, D * F * 2)
        a("s_lshl_b32 s73, s72, 2")
        a("s_add_u32 s73, s73, %s", WAVE)
        a("s_mul_i32 s69, s73, %d", 32 * BLK)
        a("s_add_u32 s69, s69, 0x%x", WS_XT)
        a("v_lshrrev_b32 v5, 4, v1")
        a("v_mul_u32_u24 v5, %d, v5", 2 * G1_GP)
        a("v_bfe_u32 v6, v1, 2, 2")
        a("v_mul_u32_u24 v6, 224, v6")
        a("v_add_u32 v5, v5, v6")
        a("v_and_b32 v6, 3, v1")
        a("v_lshl_add_u32 v5, v6, 3, v5")
        a("s_and_b32 s78, s71, 1")
        a("s_xor_b32 s79, s78, 1")
        a("s_mul_i32 s79, s79, 192")
        a("v_add_u32 v6, s79, v5")
        a("s_lshl_b32 s79, s78, 5")
        a("v_add_u32 v5, s79, v5")
        a("s_mov_b32 s70, %d", 4 * G1_STAGE)
        a("s_mul_i32 s77, s73, %d", HH_BLK)
        a("s_add_u32 s77, s77, 0x%x", WS_HH)
        a("s_mul_i32 s76, s71, %d", BLK)
        a("s_add_u32 s76, s76, s77")
        a("s_add_u32 s75, s76, %d", 32 * BLK)
        a("s_add_u32 s74, s76, %d", 64 * BLK)
        a("s_lshl_b32 s79, s71, 12")
        a("s_add_u32 s77, s77, s79")
        a("s_add_u32 s77, s77, %d", HH_SPLIT + 512)
        a("v_lshlrev_b32 v7, 3, v1")
        a("s_mov_b32 s65, s86")
        a("s_lshl_b32 s67, s86, 1")
        a("s_add_u32 s67, s67, %d", 4 * G1_STAGE)
        a("s_add_u32 s78, s88, %d", 512 * 7168)
        a("s_lshl_b32 s80, %s, 2", IDX)
        a("s_add_u32 s80, s80, %s", WAVE)
        a("s_mul_i32 s80, s80, %d", 8 * 7168)
        a("s_mul_i32 s79, %s, 896", XCD)
        a("s_add_u32 s80, s80, s79")
        a("s_lshr_b32 s79, %s, 3", IDX)
        a("s_lshl_b32 s79, s79, 2")
        a("s_mov_b32 s66, 0")
        a("s_mov_b32 s82, %d", geti("tgap", 12))

    def w_items(self, n, inloop=False):
        it = []
        for k in range(4):
            off = (n & 3) * G1_STAGE + (k >> 1) * G1_UP + (k & 1) * G1_GP
            pre = []
            if k == 0 and n > 0:
                pre.append("s_add_u32 s87, s87, %d" % (32 * 7168))
            if inloop:
                pre.append("s_add_u32 m0, s65, %d" % off)
            else:
                pre.append("s_add_u32 m0, s86, %d" % (off + ((n >> 2) & 1) * 4 * G1_STAGE))
            ld = "buffer_load_dwordx4 %s, %s, s87 offen lds" % ("v27" if k & 1 else "v26", q4(R5) if k >> 1 else q4(R4))
            it.append((pre, ld, ("W", n)))
        return it

    def x_items(self, n, inloop=False):
        it = []
        for j in range(4):
            pre = ["s_add_u32 s69, s69, %d" % BLK] if (j == 0 and n > 0) else []
            ld = "buffer_load_dwordx4 %s, v%d, %s, s69 offen sc1" % (ar(self.XF + 16 * (n & 3) + 4 * j, 4), 8 + j, WS)
            it.append((pre, ld, ("X", n)))
        return it

    def issue(self, lst):
        for k, n in lst:
            emit_items(self.a, self.w_items(n) if k == "W" else self.x_items(n), self.vm)

    def fb(self, tau, n):
        return self.WF + 4 * ((14 * (tau & 3) + n) % 8)

    def rd(self, tau, n, hh):
        p, up = n >> 1, n & 1
        off = (tau & 3) * G1_STAGE + up * G1_UP + hh * G1_GP + (0 if p == 6 else 32 * p)
        return "ds_read_b64_tr_b16 %s, %s offset:%d" % (ar(self.fb(tau, n) + 2 * hh, 2), "v6" if p == 6 else "v5", off)

    def stage(self, e, tau, lst, inloop, extra=()):
        last = tau == self.NST - 1
        gaps = [[] for _ in range(56)]
        for n in range(14):
            if n < 7:
                t2, n2 = tau, n + 7
            elif not last:
                t2, n2 = tau + 1, n - 7
            else:
                continue
            gaps[4 * n].append(self.rd(t2, n2, 0))
            gaps[4 * n + 1].append(self.rd(t2, n2, 1))
        if (tau & 3) == 3 and not last:
            gaps[4 * 6 + 2] += ["v_add_u32 v5, s70, v5", "v_add_u32 v6, s70, v6"]
            gaps[4 * 7 + 2] += ["s_sub_u32 s70, 0, s70"]
        for n in range(1, 13, 2):
            hi = min(n + 7, 13) if last else n + 7
            gaps[4 * n + 3].append("s_waitcnt lgkmcnt(%d)" % (2 * (hi - (n + 2))))
        g = [self.w_items(n, inloop) if k == "W" else self.x_items(n, inloop) for k, n in lst]
        items = [x for pair in zip(*g) for x in pair] if len(g) == 2 else [x for y in g for x in y]
        if geti("tch", 1) and (tau & 3) == 1 and tau < 28:
            items.append((["s_cmp_eq_u32 s66, s79\ns_cselect_b32 s81, s78, 0x40000000"],
                          "buffer_load_dword v30, v3, %s, s81 offen" % q4(R1), ("T", tau)))
        items += list(extra)
        slots = sorted([4 * n + 2 for n in range(14)] + [4 * n + 3 for n in range(0, 14, 2)])
        if len(items) <= 12:
            slots = [4 * n + 2 for n in range(1, 14)]
        place = place_loads(gaps, items, slots) if items else {}
        n_ = self.vm.need([("X", tau)] + ([("W", tau + 1)] if not last else []))
        self.waits.append(n_)
        e("s_waitcnt vmcnt(%d) lgkmcnt(10)" % n_)
        if not last:
            e("s_barrier")
        for i in range(56):
            n, c = i >> 2, i & 3
            j = c if n % 2 == 0 else 3 - c
            acc = vr(self.ACC + 4 * (4 * n + j), 4)
            e("v_mfma_f32_16x16x32_bf16 %s, %s, %s, %s" % (
                acc, ar(self.fb(tau, n), 4), ar(self.XF + 16 * (tau & 3) + 4 * j, 4), "0" if tau == 0 else acc))
            for f in gaps[i]:
                e(f)
            if i in place:
                e(place[i][1])
                self.vm.issue(place[i][2])

    def first_reads(self):
        for n in range(7):
            self.a(self.rd(0, n, 0))
            self.a(self.rd(0, n, 1))

    def main(self, first, extra0, g2):
        a = self.a
        vm = self.vm
        stamp(a, 14)
        for tau in range(4):
            self.stage(a, tau, first[tau], False, extra0 if tau == 3 else ())

        def post_touch():
            a("s_cmp_eq_u32 s66, s79")
            a("s_cselect_b32 s%d, s%d, s%d", R1, PWD, R1)
            a("s_cselect_b32 s%d, s%d, s%d", R1 + 1, PWD + 1, R1 + 1)
            a("s_cselect_b32 s78, s80, s78")
            a("s_cselect_b32 s81, s82, 0")
            a("s_cselect_b32 s82, 64, s82")
            a("s_add_u32 s79, s79, s81")

        post_touch()
        lo, hi = 4, 24
        a("s_mov_b32 s66, %d", lo)
        a.label("L_g1_loop")
        w0 = len(self.waits)
        sv = list(vm.q)
        for tau in range(lo, hi):
            self.stage(Null(), tau, [("W", tau + 4), ("X", tau + 3)], True)
        steady = self.waits[w0:]
        body = [min(steady[u::4]) for u in range(4)]
        end_q = list(vm.q)
        vm.q = sv
        real_need = vm.need
        for tau in range(lo, lo + 4):
            vm.need = lambda tags, v=body[(tau - lo) & 3]: v
            self.stage(a, tau, [("W", tau + 4), ("X", tau + 3)], True)
        vm.need = real_need
        vm.q = end_q
        a("s_sub_u32 s65, s67, s65")
        post_touch()
        a("s_add_u32 s66, s66, 4")
        a("s_cmp_lt_u32 s66, %d", hi)
        a("s_cbranch_scc1 L_g1_loop")
        if geti("ct", 1):
            code_touch(a, R3, 30, "L_g1_tail", "b")
        it = [x for n in (10, 11, 12, 13, 0, 1, 2, 3, 9, 14, 15, 16, 17) for x in g2.w_items(n)]
        for tau in range(24, 28):
            self.stage(a, tau, [("W", tau + 4), ("X", tau + 3)], False, it[4 * (tau - 24):4 * (tau - 23)])
        a.label("L_g1_tail")
        self.stage(a, 28, [("X", 31)], False, it[16:22])
        self.stage(a, 29, [], False, it[22:32])
        self.stage(a, 30, [], False, it[32:42])
        self.stage(a, 31, [], False, it[42:52])
        stamp(a, 15)

    def epilogue(self, g2):
        a = self.a
        a("s_barrier")
        pend = [x for n in (4, 5, 6, 7, 8) for x in g2.w_items(n)]
        pend += [x for n in range(18, 18 + g2.NVP) for x in g2.w_items(n)]
        c0 = -2.0 * 0.7978845608028654 * 1.4426950408889634
        c1 = c0 * 0.044715
        a("s_mov_b32 s82, 0x%x", f2u(c1))
        a("s_mov_b32 s83, 0x%x", f2u(c1))
        a("s_mov_b32 s84, 1.0")
        a("s_mov_b32 s85, 1.0")
        a("v_mov_b32 v12, 0x%x", f2u(c0))
        a("v_mov_b32 v13, 0x%x", f2u(c0))
        a("s_lshr_b32 s68, s92, 1")
        a("s_and_b32 s64, s92, 1")
        a("s_lshl_b32 s64, s64, 4")
        a("s_add_u32 s64, s64, s91")
        early_setup(a, 4, "s68", "s64", 78)
        a("s_add_u32 s79, s78, 65536")
        acc = lambda n, j: self.ACC + 4 * (4 * n + j)
        T = 14
        since = [0]

        def more():
            k = geti("epl", 2)
            emit_items(a, pend[:k])
            since[0] += len(pend[:k])
            del pend[:k]

        def act(gs, us):
            for p in range(4):
                a("v_pk_mul_f32 %s, %s, %s", vr(T + 2 * p, 2), vr(gs[p], 2), vr(gs[p], 2))
            for p in range(4):
                a("v_pk_fma_f32 %s, %s, s[82:83], v[12:13]", vr(T + 2 * p, 2), vr(T + 2 * p, 2))
            for p in range(4):
                a("v_pk_mul_f32 %s, %s, %s", vr(T + 2 * p, 2), vr(T + 2 * p, 2), vr(gs[p], 2))
            for e in range(8):
                a("v_exp_f32 v%d, v%d", T + e, T + e)
            for p in range(4):
                a("v_pk_mul_f32 %s, %s, %s", vr(gs[p], 2), vr(gs[p], 2), vr(us[p], 2))
            for p in range(4):
                a("v_pk_add_f32 %s, %s, s[84:85]", vr(T + 2 * p, 2), vr(T + 2 * p, 2))
            for e in range(8):
                a("v_rcp_f32 v%d, v%d", T + e, T + e)
            for p in range(4):
                a("v_pk_mul_f32 %s, %s, %s", vr(gs[p], 2), vr(gs[p], 2), vr(T + 2 * p, 2))
            for p in range(4):
                a("v_cvt_pk_bf16_f32 v%d, v%d, v%d", gs[0] + p, gs[p], gs[p] + 1)

        for jj in range(2):
            g0, u0, g1, u1 = acc(12, 2 * jj), acc(13, 2 * jj), acc(12, 2 * jj + 1), acc(13, 2 * jj + 1)
            act([g0, g0 + 2, g1, g1 + 2], [u0, u0 + 2, u1, u1 + 2])
            a("buffer_store_dwordx2 %s, v7, %s, s77 offen offset:%d sc1", vr(g0, 2), WS, 2048 * jj)
            a("buffer_store_dwordx2 %s, v7, %s, s77 offen offset:%d sc1", vr(g0 + 2, 2), WS, 2048 * jj + 1024)
            more()
        for m in (2, 1, 0):
            for j in range(4):
                g0, u0, g1, u1 = acc(4 * m, j), acc(4 * m + 1, j), acc(4 * m + 2, j), acc(4 * m + 3, j)
                act([g0, g0 + 2, g1, g1 + 2], [u0, u0 + 2, u1, u1 + 2])
                if 4 * (2 - m) + j == geti("sigb", 7):
                    signal(a, 4, "s72", "s71", since[0])
                a("buffer_store_dwordx4 %s, v%d, %s, s%d offen sc1", vr(g0, 4), 8 + j, WS, 74 + m)
                since[0] = 0 if m == 2 else since[0] + 1
                more()
                if m == 0 and j == geti("epj", 1):
                    a(early_load(78))
                    since[0] = 0
        since[0] += len(pend)
        emit_items(a, pend)
        self.keep = since[0]
        stamp(a, 16)


class G2:
    NST = 28
    WF, XF, ACC, HR = 0, 32, 32, 176
    NB, DIST, NX = 8, 5, 6
    NVP = geti('nvp', 2)

    def __init__(self, a):
        self.a = a
        self.vm = VM()

    def setup_w(self, a):
        a("s_lshr_b32 s91, %s, 2", IDX)
        a("s_cmp_eq_u32 s91, 3")
        a("s_cselect_b32 s93, 9, 11")
        a("s_and_b32 s94, %s, 1", XCD)
        a("s_lshl_b32 s92, s94, 3")
        a("s_add_u32 s91, s91, s92")
        a("s_lshl_b32 s92, s91, 7")
        a("s_lshl_b32 s94, s94, 8")
        a("s_cmp_eq_u32 s93, 9")
        a("s_cselect_b32 s94, s94, s92")
        a("v_lshrrev_b32 v14, 3, v1")
        a("v_bfe_u32 v15, v1, 4, 2")
        a("v_lshlrev_b32 v15, 1, v15")
        a("v_and_b32 v16, 7, v1")
        a("v_xor_b32 v15, v15, v16")
        a("v_lshlrev_b32 v15, 4, v15")
        a("v_add_u32 v15, s94, v15")
        for i in range(4):
            a("v_add_u32 v%d, %d, v14", 22 + i, 8 * i)
            a("v_lshlrev_b32 v%d, s93, v%d", 22 + i, 22 + i)
            a("v_add_u32 v%d, v%d, v15", 22 + i, 22 + i)
        a("v_lshlrev_b32 v14, 2, v1")
        a("v_add_u32 v14, %s, v14", WAVE)
        a("v_subrev_u32 v15, 16, v14")
        a("v_cmp_gt_u32 vcc, 32, v14")
        a("v_cndmask_b32 v15, v15, v14, vcc")
        a("v_bfe_u32 v16, v15, 1, 4")
        a("v_mul_u32_u24 v16, 7, v16")
        a("v_and_b32 v17, 1, v15")
        a("v_lshl_add_u32 v16, v17, 2, v16")
        a("v_lshrrev_b32 v15, 5, v15")
        a("v_sub_u32 v16, v16, v15")
        a("v_add_u32 v16, 2, v16")
        a("v_subrev_u32 v14, 32, v14")
        a("v_cmp_gt_u32 vcc, 16, v14")
        a("v_mul_u32_u24 v14, 7, v14")
        a("v_add_u32 v14, 3, v14")
        a("v_cndmask_b32 v2, v16, v14, vcc")
        a("s_add_u32 s92, s93, 5")
        a("v_lshlrev_b32 v2, s92, v2")
        a("s_lshl_b32 s89, %s, 12", WAVE)
        a("s_add_u32 s94, s%d, 0x%x\ns_addc_u32 s95, s%d, 0", PWS, WS_WC, PWS + 1)
        a("s_cmp_eq_u32 s93, 9")
        a("s_cselect_b32 s%d, s94, s%d", R0, PWD)
        a("s_cselect_b32 s%d, s95, s%d", R0 + 1, PWD + 1)
        a("s_mov_b32 s94, 0x%x", F * D * 2)
        a("s_cselect_b32 s%d, 0x%x, s94", R0 + 2, WC_SZ)
        a("s_mov_b32 s%d, 0x20000", R0 + 3)
        a("s_lshr_b32 s92, %s, 1", XCD)
        a("s_lshl_b32 s92, s92, 2")
        a("s_and_b32 s94, %s, 3", IDX)
        a("s_add_u32 s92, s92, s94")
        a("s_and_b32 s93, %s, 1", WAVE)
        a("s_lshl_b32 s94, s92, 1")
        a("s_add_u32 s94, s94, s93")
        a("s_mul_i32 s31, s94, %d", HH_BLK)
        a("s_add_u32 s31, s31, 0x%x", WS_HH)
        a("s_lshr_b32 s93, %s, 1", WAVE)
        a("s_mul_i32 s30, s93, %d", 2 * BLK)
        a("s_add_u32 s30, s30, s31")
        a("s_lshl_b32 s93, s93, 14")
        a("s_add_u32 s31, s31, s93")
        a("s_add_u32 s31, s31, %d", HH_SPLIT + 512)

    def setup2(self):
        a = self.a
        a("s_lshr_b32 s64, %s, 1", WAVE)
        a("s_lshl_b32 s64, s64, 6")
        a("v_lshrrev_b32 v3, 2, v1")
        a("v_add_u32 v4, s64, v3")
        a("v_lshlrev_b32 v4, 7, v4")
        a("v_and_b32 v5, 3, v1")
        a("v_lshl_add_u32 v4, v5, 3, v4")
        a("v_bfe_u32 v3, v1, 3, 2")
        a("v_lshlrev_b32 v3, 5, v3")
        a("v_xor_b32 v3, s64, v3")
        for t in range(4):
            a("v_xor_b32 v5, %d, v3", 32 * t)
            a("v_add_u32 v%d, v4, v5", 16 + t)

    def setup3(self, a):
        srd(a, R6, POUT, 0, S * D * 2)
        a("v_lshlrev_b32 v20, 4, v1")
        a("v_add_u32 v20, s89, v20")
        a("s_and_b32 s65, %s, 1", WAVE)
        a("s_lshl_b32 s66, s92, 1")
        a("s_add_u32 s65, s65, s66")
        a("s_lshl_b32 s65, s65, 6")
        a("v_and_b32 v6, 15, v1")
        a("v_add_u32 v6, s65, v6")
        a("v_lshlrev_b32 v6, 11, v6")
        a("s_lshl_b32 s65, s91, 7")
        a("s_add_u32 s65, s65, s64")
        a("v_add_u32 v6, s65, v6")
        a("v_bfe_u32 v5, v1, 4, 1")
        a("v_lshl_add_u32 v6, v5, 5, v6")
        a("v_lshrrev_b32 v5, 5, v1")
        a("v_lshl_add_u32 v6, v5, 4, v6")
        a("v_add_u32 v21, 0x%x, v6", WS_H)
        a("s_mov_b32 s74, 32768")
        a("s_mov_b32 s75, 65536")
        a("s_mov_b32 s76, 98304")
        a("v_lshlrev_b32 v5, 4, v1")
        a("s_lshl_b32 s65, %s, 13", WAVE)
        a("v_add_u32 v3, s65, v5")
        a("s_xor_b32 s65, s65, 0x4000")
        a("v_add_u32 v4, s65, v5")

    def park(self, n):
        if 10 <= n < 18:
            return ("a", 128 + 16 * (n - 10))
        if 18 <= n < 18 + self.NVP:
            return ("v", 240 - 16 * (n - 18))
        return None

    def w_items(self, n):
        it = []
        for k in range(4):
            pre = []
            if k == 0:
                pre.append("v_readlane_b32 s95, v2, %d" % n)
                pre.append("s_mov_b32 s90, s95")
            pk = self.park(n)
            if pk is None:
                pre.append("s_add_u32 m0, s89, %d" % ((n % 10) * G2_STAGE + k * 1024))
                ld = "buffer_load_dwordx4 v%d, %s, s90 offen sc1 lds" % (22 + k, q4(R0))
            else:
                ld = "buffer_load_dwordx4 %s[%d:%d], v%d, %s, s90 offen sc1" % (pk[0], pk[1] + 4 * k, pk[1] + 4 * k + 3, 22 + k, q4(R0))
            it.append((pre, ld, ("V", n)))
        return it

    def x_items(self, i):
        it = []
        n, q = i >> 1, i & 1
        r = self.XF + 16 * (i % self.NX)
        if not 8 <= n < 12:
            for j in range(4):
                pre = ["s_add_u32 s69, s30, %d" % ((4 * (n if n < 8 else n - 4) + q) * BLK)] if j == 0 else []
                ld = "buffer_load_dwordx4 %s, v%d, %s, s69 offen sc1" % (ar(r + 4 * j, 4), 8 + j, WS)
                it.append((pre, ld, ("X", i)))
        else:
            for h in range(2):
                for j in range(4):
                    pre = ["s_add_u32 s69, s31, %d" % ((4 * (n - 8) + q) * 8192 + 4096 * h)] if j == 0 else []
                    ld = "buffer_load_dwordx2 %s, v7, %s, s69 offen offset:%d sc1" % (ar(r + 4 * j + 2 * h, 2), WS, 1024 * j)
                    it.append((pre, ld, ("X", i)))
        return it

    def fb(self, f):
        return self.WF + 4 * (f % self.NB)

    def rd(self, f):
        i, t = f >> 2, f & 3
        slot = (i >> 1) % 10
        out = []
        base = (slot >> 2) * 65536
        if base != self.rbase[t]:
            out.append("v_add_u32 v%d, 0x%x, v%d" % (16 + t, (base - self.rbase[t]) & 0xffffffff, 16 + t))
            self.rbase[t] = base
        rs = ["ds_read_b64_tr_b16 %s, v%d offset:%d" % (
            ar(self.fb(f) + 2 * hh, 2), 16 + t, (slot & 3) * G2_STAGE + (32 * (i & 1) + 16 * hh) * 128) for hh in range(2)]
        return out, rs

    def first_reads(self):
        self.rbase = [0] * 4
        self.wbase = 0
        self.lq = []
        for f in range(self.DIST):
            for r in self.rd(f)[1]:
                self.a(r)
                self.lq.append(f)

    def lwait(self, f):
        last = max(k for k, x in enumerate(self.lq) if x == f)
        n = len(self.lq) - 1 - last
        assert n <= 15
        return n

    def main(self):
        a = self.a
        for i in range(self.NX - 1):
            emit_items(a, self.x_items(i), self.vm)
        sh = Cap()
        self.setup3(sh)
        for l in sh.l:
            a(l)
        stamp(a, 19)
        NS = 2 * self.NST
        so = ["0", "s74", "s75", "s76"]
        for i in range(NS):
            gaps = [[] for _ in range(16)]
            lds = {}
            for t in range(4):
                f = 4 * i + t + self.DIST
                if f < 4 * NS:
                    mv, rs = self.rd(f)
                    gaps[4 * t] += mv
                    gaps[4 * t].append(rs[0])
                    gaps[4 * t + 1].append(rs[1])
                    lds[rs[0]] = lds[rs[1]] = f
            items = self.x_items(i + self.NX - 1) if i + self.NX - 1 < NS else []
            if i == NS - self.NX + 1:
                items = [([], "buffer_load_dwordx4 %s, v21, %s, %s offen sc1" % (vr(self.HR + 4 * j, 4), WS, so[j]),
                          ("H", j)) for j in range(4)]
            slots = [2, 6, 10, 14] if len(items) <= 4 else [2, 3, 6, 7, 10, 11, 14, 15]
            n = (i >> 1) + 6
            if 10 <= n < 28:
                pk = self.park(n)
                if pk:
                    slot = n % 10
                    base = (slot >> 2) * 65536
                    if base != self.wbase:
                        gaps[1].append("v_add_u32 v20, 0x%x, v20" % ((base - self.wbase) & 0xffffffff))
                        self.wbase = base
                    for kk in range(4):
                        k, hf = 2 * (i & 1) + (kk >> 1), kk & 1
                        r = pk[1] + 4 * k + 2 * hf
                        w = "ds_write_b64 v20, %s[%d:%d] offset:%d" % (pk[0], r, r + 1, (slot & 3) * G2_STAGE + 1024 * k + 8 * hf)
                        gaps[3 + 4 * kk].append(w)
                        lds[w] = -1
                else:
                    w = self.w_items(n)[2 * (i & 1):2 * (i & 1) + 2]
                    items = [items[0], items[1], w[0], items[2], items[3], w[1]]
                    slots = [2, 3, 7, 10, 11, 15]
            if len(items) == 8 and self.park(n):
                slots = [1, 2, 5, 6, 9, 10, 13, 14]
            if i == geti("p5at", 14):
                items = items + [([], early_load(79), ("P", 5))]
                slots = sorted(slots + [12])
            place = place_loads(gaps, items, slots) if items else {}
            bar = i % 8 == 0 and 8 <= i <= 48
            need = [("X", i)]
            if bar:
                need += [("V", m) for m in range(i // 2 + 1, i // 2 + 5) if ("V", m) in self.vm.q]
            if i in (16, 28, 44) and geti("g2st", 0):
                stamp(a, {16: 20, 28: 22, 44: 23}[i])
            if i == 17:
                early_check(a, 5, 79, self.vm.need([("P", 5)]))
                if geti("g2st", 0):
                    stamp(a, 21)
            a("s_waitcnt vmcnt(%d) lgkmcnt(%d)" % (self.vm.need(need), 0 if bar else self.lwait(4 * i + 1)))
            if bar or i == 1:
                a("s_barrier")
            if i == 1:
                flag_store(a, 5, "s72", "s71", 1)
            for g in range(16):
                t, c = g >> 2, g & 3
                j = c if t % 2 == 0 else 3 - c
                acc = vr(self.ACC + 4 * (4 * t + j), 4)
                if g == 8:
                    a("s_waitcnt lgkmcnt(%d)" % self.lwait(4 * i + 3))
                a("v_mfma_f32_16x16x32_bf16 %s, %s, %s, %s" % (
                    acc, ar(self.fb(4 * i + t), 4), ar(self.XF + 16 * (i % self.NX) + 4 * j, 4), "0" if i == 0 else acc))
                for f in gaps[g]:
                    a(f)
                    if f in lds:
                        self.lq.append(lds[f])
                if g in place:
                    a(place[g][1])
                    self.vm.issue(place[g][2])
        stamp(a, 24)
        ACC, HR = self.ACC, self.HR
        for i in range(8):
            a("ds_write_b128 v3, %s offset:%d", vr(ACC + 32 + 4 * i, 4), 1024 * i)
        HF = 112
        a("s_waitcnt vmcnt(0)")
        for i in range(16):
            unpack(a, HF + 2 * i, HR + i)
        a("s_waitcnt lgkmcnt(0)")
        a("s_barrier")
        R = 144
        for j in range(4):
            for t in range(2):
                i = 4 * t + j
                a("ds_read_b128 %s, v4 offset:%d", vr(R + 4 * i, 4), 1024 * i)
        for j in range(4):
            a("s_waitcnt lgkmcnt(%d)", 2 * (3 - j))
            t0, t1 = ACC + 4 * j, ACC + 16 + 4 * j
            for t, b in ((0, t0), (1, t1)):
                for p in range(2):
                    a("v_pk_add_f32 %s, %s, %s", vr(b + 2 * p, 2), vr(b + 2 * p, 2), vr(R + 4 * (4 * t + j) + 2 * p, 2))
            for r in range(4):
                a("v_permlane16_swap_b32 v%d, v%d", t0 + r, t1 + r)
            for t, b in ((0, t0), (1, t1)):
                for p in range(2):
                    a("v_pk_add_f32 %s, %s, %s", vr(b + 2 * p, 2), vr(b + 2 * p, 2), vr(HF + 8 * j + 4 * t + 2 * p, 2))
            a("v_cvt_pk_bf16_f32 v%d, v%d, v%d", t0, t0, t0 + 1)
            a("v_cvt_pk_bf16_f32 v%d, v%d, v%d", t0 + 1, t0 + 2, t0 + 3)
            a("v_cvt_pk_bf16_f32 v%d, v%d, v%d", t0 + 2, t1, t1 + 1)
            a("v_cvt_pk_bf16_f32 v%d, v%d, v%d", t0 + 3, t1 + 2, t1 + 3)
            a("buffer_store_dwordx4 %s, v6, %s, %s offen %s", vr(t0, 4), q4(R6), so[j], P.get("omod", ""))
        stamp(a, 25)


def gen():
    a = Asm()
    g, g2 = G1(a), G2(a)
    phase_pre(a)
    build_h(a)
    signal(a, 1, XCD, IDX)
    stamp(a, 3)
    if XEARLY:
        x_unpack(a)
        ln_stats(a, XF, 0)
    await_(a, 1, XCD, IDX)
    stamp(a, 4)
    sh = Cap()
    ln_setup(sh)
    g.setup(sh)
    g2.setup_w(sh)
    phase_conv(a, sh.l)
    a("s_waitcnt vmcnt(4)")
    a("buffer_store_dwordx4 %s, v%d, %s, 0 offen sc1", vr(VWD, 4), VWS, WS)
    x_unpack(a)
    lx = lambda: [a("v_pk_fma_f32 %s, %s, v[18:19], v[20:21]", vr(LX + 2 * i, 2), vr(XF + 2 * i, 2)) for i in range(16)]
    if XEARLY:
        lx()
    signal(a, 2, XCD, IDX)
    stamp(a, 8)
    if not XEARLY:
        ln_stats(a, XF, 0)
        lx()
    await_(a, 2, None)
    stamp(a, 9)
    phase_ln(a, lambda: g.issue([("W", 0)]), 4)
    g.issue([("W", 1), ("W", 2), ("W", 3)])
    for i in range(16):
        a("v_accvgpr_write_b32 a%d, v%d", HA + i, XR + i)
    a("v_add_u32 v4, 0x%x, v%d", WS_H, VHO)
    signal(a, 3, "s72", "s71", 12)
    stamp(a, 12)
    g.first_reads()
    await_(a, 3, "s72", "s71")
    stamp(a, 13)
    g.issue([("X", 0), ("X", 1)])
    hst = [([], "buffer_store_dwordx4 %s, v4, %s, 0 offen offset:%d sc1" % (ar(HA + 4 * i, 4), WS, 512 * i), ("S", i))
           for i in range(4)]
    first = [[("X", 2), ("W", 4), ("X", 3)], [("W", 5), ("X", 4)], [("W", 6), ("X", 5)], [("W", 7), ("X", 6)]]
    g.main(first, hst, g2)
    a("s_cmp_lg_u32 s2, 0")
    a("s_cbranch_scc1 L_noepoch")
    a("s_mov_b32 s64, 0x%x", WS_FL)
    a("s_mov_b64 exec, 1")
    a("buffer_store_dword v28, off, %s, s64 sc0 sc1", WS)
    a("s_mov_b64 exec, -1")
    a.label("L_noepoch")
    g.epilogue(g2)
    g2.setup2()
    g2.first_reads()
    early_check(a, 4, 78, g.keep)
    stamp(a, 18)
    g2.main()
    if STAMP and geti("dbgwg", -1) >= 0:
        a("s_waitcnt vmcnt(0)")
        stamp(a, 31)
        a("s_cmp_lg_u32 s2, %d", geti("dbgwg", -1))
        a("s_cbranch_scc1 L_end")
        a("s_cmp_lg_u32 %s, 0", WAVE)
        a("s_cbranch_scc1 L_end")
        a("s_load_dwordx2 s[64:65], s[0:1], 88")
        a("v_readlane_b32 s66, v31, 32")
        for i, k in enumerate((1, 4, 5, 6, 8, 9, 11, 12, 13, 15, 16, 18, 19, 24, 31)):
            a("v_readlane_b32 s67, v31, %d", 32 + k)
            a("s_sub_u32 s67, s67, s66")
            a("v_writelane_b32 v2, s67, %d", i)
        a("v_readlane_b32 s67, v31, 15")
        a("v_readlane_b32 s66, v31, 14")
        a("s_sub_u32 s67, s67, s66")
        a("v_writelane_b32 v2, s67, 15")
        a("s_waitcnt lgkmcnt(0)")
        srd(a, R0, 64, 0, 64)
        a("v_lshlrev_b32 v3, 2, v1")
        a("buffer_store_dword v2, v3, %s, 0 offen", q4(R0))
    elif STAMP:
        a("s_waitcnt vmcnt(0)")
        stamp(a, 31)
        srd(a, R0, PWS, WS_ST, MB)
        a("s_lshl_b32 s64, s2, 10")
        a("v_lshlrev_b32 v2, 2, v0")
        a("buffer_store_dword v31, v2, %s, s64 offen", q4(R0))
    a.label("L_end")
    a("s_endpgm")
    a.label("L_code_end")
    return a


def build(path):
    name = NAME + "_kernel"
    out = HEADER
    if geti("aslist", 0):
        out += "; @launch kernel=%s grid=(256,1,1) block=(256,1,1) lds=%d\n" % (name, LDS_ALL)
    else:
        out += "; @launch grid=(256,1,1) block=(256,1,1) lds=%d\n" % LDS_ALL
    out += '.amdgcn_target "amdgcn-amd-amdhsa--gfx950"\n'
    a = gen()
    code, desc, info = kernel_text(name, a)
    print("vgpr/agpr/sgpr", info, "insts", len(a.ins), file=sys.stderr)
    open(path, "w").write(out + code + desc)


if __name__ == "__main__":
    build(sys.argv[1] if len(sys.argv) > 1 else "cdna_kernels/" + NAME + ".s")
```
